```python
import torch

def _softmax(x, axis=-1):
    return torch.softmax(x, dim=axis)
def _gelu(x):
    return torch.nn.functional.gelu(x, approximate="tanh")
def _silu(x):
    return torch.nn.functional.silu(x)
def _sigmoid(x):
    return torch.sigmoid(x)
def _layernorm(x, axis=-1, eps=1e-5):
    m = x.mean(dim=axis, keepdim=True)
    v = x.var(dim=axis, keepdim=True, unbiased=False)
    return (x - m) / torch.sqrt(v + eps)
def _scatter_add(tgt, idx, src, axis=0):
    return tgt.clone().index_add_(axis, idx, src)
def _segment_sum(src, seg, n):
    out = torch.zeros((n,) + src.shape[1:], dtype=src.dtype)
    return out.index_add_(0, seg, src)
def _pad(x, pw):
    flat = tuple(v for pair in reversed(pw) for v in pair)
    return torch.nn.functional.pad(x, flat)

kernel_name = 'recurrent_scan__mha_block__moe_arch_mod__prompt'

def setup_inputs():

    _w = (lambda a: (lambda t: t.to(torch.bfloat16) if t.is_floating_point() else t)(torch.as_tensor(a)))
    def _A_setup():
        B, S, D, H = 1, 2048, 448, 16
        return {
            "x": _w((lambda *s: torch.randn(*s, dtype=torch.bfloat16) * 0.05)(B, S, D)),
            "wqkv": _w((lambda *s: torch.randn(*s, dtype=torch.bfloat16) * 0.05)(D, 3 * D)),
            "wo": _w((lambda *s: torch.randn(*s, dtype=torch.bfloat16) * 0.05)(D, D)),
        }
    _A_in = _A_setup()

    def _B_setup():
        B, S, D, F, C = 1, 2048, 448, 1792, 2
        return {
            "x": _w((lambda *s: torch.randn(*s, dtype=torch.bfloat16) * 0.05)(B, S, D)),
            "w_r": _w((lambda *s: torch.randn(*s, dtype=torch.bfloat16) * 0.05)(D)),
            "w_gate": _w((lambda *s: torch.randn(*s, dtype=torch.bfloat16) * 0.05)(D, F)),
            "w_up": _w((lambda *s: torch.randn(*s, dtype=torch.bfloat16) * 0.05)(D, F)),
            "w_down": _w((lambda *s: torch.randn(*s, dtype=torch.bfloat16) * 0.05)(F, D)),
        }
    _B_in = _B_setup()

    return {
        "A_x": _A_in["x"],
        "A_wqkv": _A_in["wqkv"],
        "A_wo": _A_in["wo"],
        "B_x": _B_in["x"],
        "B_w_r": _B_in["w_r"],
        "B_w_gate": _B_in["w_gate"],
        "B_w_up": _B_in["w_up"],
        "B_w_down": _B_in["w_down"],
    }

def reference(A_x, A_wqkv, A_wo, B_x, B_w_r, B_w_gate, B_w_up, B_w_down):
    def _A_ref(x, wqkv, wo):
        B, S, D = x.shape
        H = 16
        Dh = D // H
        qkv = (lambda x, *d: x.permute(*d))((x @ wqkv).reshape(B, S, 3, H, Dh), 2, 0, 3, 1, 4)
        q, k, v = qkv[0], qkv[1], qkv[2]
        scores = torch.einsum("bhqd,bhkd->bhqk", q, k) * (Dh ** -0.5)
        p = _softmax(scores, axis=-1)
        o = torch.einsum("bhqk,bhkd->bhqd", p, v)
        return (lambda x, *d: x.permute(*d))(o, 0, 2, 1, 3).reshape(B, S, D) @ wo

    def _B_ref(x, w_r, w_gate, w_up, w_down):
        B, S, D = x.shape
        C = 2
        r = x @ w_r
        idx = torch.argsort(-r, axis=-1)[:, :C]
        idx_e = (lambda x, n, axis: torch.repeat_interleave(x, n, dim=axis))(idx.reshape(B, C, 1), D, axis=2)
        x_sel = (lambda x, i, axis: torch.take_along_dim(x, i, dim=axis))(x, idx_e, axis=1)
        g = _silu(x_sel @ w_gate)
        u = x_sel @ w_up
        y = (g * u) @ w_down
        r_sel = _sigmoid((lambda x, i, axis: torch.take_along_dim(x, i, dim=axis))(r, idx, axis=1))
        y = y * r_sel.reshape(B, C, 1)
        b_off = (torch.arange(B) * S).reshape(B, 1)
        flat_idx = (idx + b_off).reshape(B * C)
        zero = (x * 0.0).reshape(B * S, D)
        upd = _scatter_add(zero, flat_idx, y.reshape(B * C, D), axis=0)
        return x + upd.reshape(B, S, D)

    x = A_x
    xn = _layernorm(x, axis=-1)
    s = _A_ref(xn, A_wqkv, A_wo)
    g = _silu(_B_ref(xn, B_w_r, B_w_gate, B_w_up, B_w_down))
    return x + s * g
```

```python
import re

REG_RE = re.compile(r'^(-|abs\(|\|)?([vas])(?:\[(\d+):(\d+)\]|(\d+))\)?\|?$')

def regs_of(op):
    op = op.strip()
    if op in ('vcc',): return {'vcc'}
    if op in ('vcc_lo', 'vcc_hi'): return {'vcc'}
    if op in ('exec', 'exec_lo', 'exec_hi'): return {'exec'}
    if op == 'm0': return {'m0'}
    m = REG_RE.match(op)
    if not m: return set()
    k = m.group(2)
    if m.group(3) is not None:
        return {f"{k}{i}" for i in range(int(m.group(3)), int(m.group(4)) + 1)}
    return {f"{k}{int(m.group(5))}"}

TRANS = ('v_exp_', 'v_log_', 'v_rcp_', 'v_rsq_', 'v_sqrt_', 'v_sin_', 'v_cos_')

class Ins:
    __slots__ = ('text', 'op', 'rd', 'wr', 'kind', 'passes', 'srcc', 'srcab', 'dpp', 'wide_store', 'store_data')
    def __init__(self, text):
        self.text = text
        t = text.split(';')[0].strip()
        parts = t.split(None, 1)
        self.op = op = parts[0]
        ops = []
        if len(parts) > 1:
            cur = ''; depth = 0
            for ch in parts[1]:
                if ch in '[(': depth += 1
                if ch in '])': depth -= 1
                if ch == ',' and depth == 0:
                    ops.append(cur.strip()); cur = ''
                else: cur += ch
            ops.append(cur.strip())
            last = ops[-1].split()
            mods = last[1:]
            ops[-1] = last[0] if last else ''
        else:
            mods = []
        self.rd = set(); self.wr = set(); self.passes = 0; self.srcc = set(); self.srcab = set()
        self.dpp = op.endswith('_dpp'); self.wide_store = False; self.store_data = set()
        R = [regs_of(o) for o in ops]
        if op.startswith('v_mfma'):
            self.kind = 'mfma'
            self.passes = 8 if '32x32' in op else 4
            self.wr = R[0]; self.srcab = R[1] | R[2]; self.srcc = R[3]; self.rd = self.srcab | self.srcc
        elif op.startswith('v_'):
            self.kind = 'valu'
            if op.startswith('v_cmp'):
                self.wr = R[0]; self.rd = set().union(*R[1:])
            elif 'permlane' in op and 'swap' in op:
                self.wr = R[0] | R[1]; self.rd = R[0] | R[1]
            elif op.startswith(('v_add_co', 'v_sub_co', 'v_addc_co', 'v_subb_co', 'v_div_scale', 'v_mad_u64')):
                self.wr = R[0] | R[1]; self.rd = set().union(*R[2:])
            elif op == 'v_nop':
                pass
            else:
                self.wr = R[0]; self.rd = set().union(*R[1:]) if len(R) > 1 else set()
                if op.startswith(('v_fmac', 'v_dot2c', 'v_writelane')) or self.dpp or 'sdwa' in op:
                    self.rd |= R[0]
        elif op.startswith(('buffer_', 'global_')):
            self.kind = 'vmem'
            if 'lds' in mods or '_lds_' in op:
                self.rd = set().union(*R) | {'m0'}
            elif '_load' in op:
                self.wr = R[0]; self.rd = set().union(*R[1:])
                if 'd16' in op: self.rd |= R[0]
            else:
                self.rd = set().union(*R)
                if 'x4' in op or 'x3' in op:
                    self.wide_store = True
                    self.store_data = R[0] if op.startswith('buffer_') else R[1]
                if 'atomic' in op and 'sc0' in mods: self.wr = R[0]
        elif op.startswith('ds_'):
            self.kind = 'ds'
            if op.startswith(('ds_read', 'ds_bpermute', 'ds_permute', 'ds_swizzle')):
                self.wr = R[0]; self.rd = set().union(*R[1:])
            else:
                self.rd = set().union(*R)
        elif op.startswith('s_'):
            self.kind = 'salu'
            if op.startswith(('s_cmp', 's_waitcnt', 's_nop', 's_barrier', 's_branch', 's_cbranch', 's_sleep', 's_endpgm', 's_setprio', 's_bitcmp')):
                self.rd = set().union(*R) if R else set()
            else:
                self.wr = R[0]; self.rd = set().union(*R[1:]) if len(R) > 1 else set()
                if 'saveexec' in op: self.wr |= {'exec'}
        else:
            self.kind = 'other'
    def states(self):
        if self.op == 's_nop':
            return int(self.text.split()[1], 0) + 1
        return 1

def need_states(a, b):
    n = 0
    av = {r for r in a.wr if r[0] in 'va' and r != 'vcc'}
    asg = {r for r in a.wr if r[0] == 's' or r == 'vcc'}
    if a.kind == 'valu':
        isdot = a.op.startswith('v_dot')
        if b.kind == 'mfma' and av & b.rd: n = max(n, 3 if isdot else 2)
        if b.kind == 'valu':
            if a.op.startswith(TRANS) and not b.op.startswith(TRANS) and av & b.rd: n = max(n, 1)
            if 'permlane' in b.op and av & b.rd: n = max(n, 2)
            if b.dpp and av & b.rd: n = max(n, 2)
            if b.op.startswith(('v_readlane', 'v_readfirstlane')) and av & b.rd: n = max(n, 1)
            if asg & b.rd:
                n = max(n, 4 if b.op.startswith(('v_readlane', 'v_writelane', 'v_div_fmas')) else 2)
            if 'vcc' in asg and b.op.startswith(('v_cndmask', 'v_addc', 'v_subb')) and 'vcc' in b.text: n = max(n, 2)
            if isdot and b.op != a.op and av & (b.rd | b.wr): n = max(n, 3)
            if ('sdwa' in a.op or 'op_sel:' in a.text) and av & (b.rd | b.wr): n = max(n, 1)
        if isdot and b.kind in ('vmem', 'ds') and av & b.rd: n = max(n, 3)
        if b.kind == 'vmem' and asg & b.rd: n = max(n, 5)
        if 'exec' in a.wr: n = max(n, 5)
    if a.kind == 'mfma':
        big = a.passes == 8
        if b.kind == 'mfma':
            if a.wr & b.srcab: n = max(n, 12 if big else 8)
            if a.wr & b.srcc and not (a.wr == b.srcc and a.passes == b.passes): n = max(n, 10 if big else 6)
            if a.wr & b.wr and not (a.wr & b.srcc): n = max(n, 10 if big else 6)
        elif b.kind in ('valu', 'vmem', 'ds'):
            if a.wr & (b.rd | b.wr): n = max(n, 12 if big else 8)
            if b.kind == 'valu' and a.srcc & b.wr: n = max(n, 7 if big else 3)
    if a.kind == 'salu' and 'm0' in a.wr and b.kind == 'vmem' and 'm0' in b.rd: n = max(n, 1)
    if a.kind == 'vmem' and a.wide_store and a.store_data & b.wr: n = max(n, 2)
    return n

class Asm:
    def __init__(self):
        self.L = []
        self.vm = []
        self.lg = []
        self.nops = 0
        self.verbose = False
    def raw(self, s): self.L.append(s)
    def label(self, name):
        self.L.append(name + ':')
    def c(self, s): self.L.append('    ; ' + s)
    def __call__(self, text, tag=None):
        for line in text.strip().split('\n'):
            line = line.strip()
            if not line or line.startswith(';'): continue
            if line.endswith(':'):
                self.L.append(line); continue
            ins = Ins(line)
            dist = 0; need = 0; who = None
            for prev in reversed(self.L):
                if isinstance(prev, str): continue
                k = need_states(prev, ins) - dist
                if k > need: need = k; who = prev
                dist += prev.states()
                if dist >= 20: break
            if need > 0:
                self.nops += need
                if self.verbose: print(f"nop {need}: [{who.text}] -> [{line}]")
                while need > 0:
                    k = min(need, 16)
                    self.L.append(Ins(f"s_nop {k-1}")); need -= k
            self.L.append(ins)
            if ins.kind == 'vmem': self.vm.append(tag)
            if ins.kind == 'ds': self.lg.append(tag)
            if ins.op == 's_waitcnt':
                m = re.search(r'vmcnt\((\d+)\)', line)
                if m:
                    n = int(m.group(1)); self.vm = self.vm[len(self.vm) - n:] if n < len(self.vm) else self.vm
                    if n == 0: self.vm = []
                m = re.search(r'lgkmcnt\((\d+)\)', line)
                if m:
                    n = int(m.group(1)); self.lg = self.lg[len(self.lg) - n:] if n < len(self.lg) else self.lg
                    if n == 0: self.lg = []
    def _cnt(self, q, tags, mx):
        idx = [i for i, t in enumerate(q) if t in tags]
        if not idx: return None
        return min(len(q) - 1 - max(idx), mx)
    def wait(self, vm=(), lg=()):
        if isinstance(vm, str): vm = (vm,)
        if isinstance(lg, str): lg = (lg,)
        a = self._cnt(self.vm, vm, 63); b = self._cnt(self.lg, lg, 15)
        s = []
        if a is not None: s.append(f"vmcnt({a})")
        if b is not None: s.append(f"lgkmcnt({b})")
        if s: self("s_waitcnt " + " ".join(s)); return True
        return False
    def text(self):
        return "\n".join(x if isinstance(x, str) else "    " + x.text for x in self.L) + "\n"

def v(a, n=1): return f"v{a}" if n == 1 else f"v[{a}:{a+n-1}]"
def acc(a, n=1): return f"a{a}" if n == 1 else f"a[{a}:{a+n-1}]"
def s(a, n=1): return f"s{a}" if n == 1 else f"s[{a}:{a+n-1}]"
```

```python
import sys, math, struct
from asmlib import *

NAME = "recurrent_scan__mha_block__moe_arch_mod__prompt_kernel"

def f2u(x): return struct.unpack('<I', struct.pack('<f', x))[0]

KV_SZ   = 0x420000
WS_KVA  = 0
WS_KVB  = KV_SZ
ST_OFF  = 0x400000
WS_O    = 0x900000
WS_Y    = 0xB00000
WS_F    = 0xC00000
WS_PROF = 0xD00000
WS_DBG  = 0xE00000
WS_SIZE = 0x1000000
OOB     = 0x40000000

L_W   = 0
L_WV  = 57344
WVSZ  = 24576
L_WQ  = 16384
L_QX  = 0
L_G   = 2048
L_U   = 4160
L_WD  = 6400
L_H   = 9472
L_R   = 10240
L_R3  = 2048
L_MISC = L_WV + 4 * WVSZ
L_ST  = L_MISC
L_L   = L_MISC + 512
L_YR  = L_MISC + 2560
L_MX  = L_MISC + 3584
L_FP  = L_MISC + 4096
LDS_SIZE = 163840

SX, SW, SWS, SWR, SDB, SOUT, SWO, SG, SU, SWD = 28, 32, 36, 40, 44, 48, 52, 56, 60, 64
s_pc = 26
s_w, s_x, s_j, s_p, s_tb, s_h, s_c, s_xcc = 3, 4, 5, 6, 7, 8, 9, 10
s_t0, s_t1, s_t2, s_t3 = 11, 12, 13, 14
s_xb, s_wb, s_lw = 15, 16, 17
s_wmask = 18
s_lo = 20
s_ones = 22
s_kv0, s_kv1 = 23, 24
s_fo = 25
s_kvc = 68
s_reg = 69
s_cnt = 70
s_k1, s_k2 = 71, 72
s_ia, s_ib = 73, 74
s_fail = 75
s_qt = 76
s_chk = 77
s_ob = 78
s_oc = 79
s_lw2 = 80
s_hi16 = 81
s_sv = 82
s_wq = 84
s_outb = 85
s_lead = 86
s_stamp = 88

v_lane = 1
v_l16 = 2
XF = 128; ACC0 = 64; ACC1 = 80; ACCQ = 96; RSB = 112; PK = 240
CS0 = 32; CS1 = 36; CSQ = 40; SEL = 44; XOP = 48; WOP0 = 52; WOP1 = 56
WF = 192
QF = 32; OA = 64; S_ = [128, 144]; P_ = [160, 168]
XV = 16; GV = 24

class Cfg:
    prof = False
    dbg = False
    D = 3
    spin = 200000
    fto = 64
    force_slow_kv = False
    force_slow_sm = False
    nq_pre = 3
    flag_at = 8
    poll_at = 20
    stop = 99
    kv_pre = 3
    kv_rate = 2
    gu_at = 7
    ffn_at = 12
    wo_at = 11
    gu_gap = 12

def stamp(a, cfg, i):
    if cfg.prof:
        a(f"s_waitcnt lgkmcnt(0)")
        a(f"s_memrealtime s[{s_sv}:{s_sv+1}]")
        a(f"s_waitcnt lgkmcnt(0)")
        a(f"s_mov_b32 s{s_stamp+i}, s{s_sv}")

def interleave(a, mf, shadow, fill, per_gap):
    for i, m in enumerate(mf):
        a(m)
        if shadow:
            t = shadow.pop(0)
            t(a) if callable(t) else a(t[0], t[1])
        for _ in range(per_gap[i]):
            if fill: a(fill.pop(0))

def next_chunk(a):
    a(f"""
    s_add_u32 s{s_c}, s{s_c}, 1
    s_cmp_eq_u32 s{s_c}, 7
    s_cselect_b32 s{s_c}, 0, s{s_c}
    """)

def dma_chunk(i):
    L = []
    def x0(a):
        a(f"""
        s_lshl_b32 s{s_t0}, s{s_c}, 7
        s_add_u32 s{s_t0}, s{s_t0}, s{s_xb}
        s_add_u32 m0, s{s_lw}, {(i % 4) * 4096}
        s_mul_i32 s{s_t1}, s{s_c}, {64*2688}
        """)
        a(f"buffer_load_dwordx4 v3, s[{SX}:{SX+3}], s{s_t0} offen lds", f"c{i}")
    L.append(x0)
    for rb in (1, 2, 3):
        L.append((f"buffer_load_dwordx4 v{3+rb}, s[{SX}:{SX+3}], s{s_t0} offen offset:{1024*rb} lds", f"c{i}"))
    def w0(a):
        a(f"""
        s_add_u32 s{s_t1}, s{s_t1}, s{s_wb}
        s_add_u32 m0, s{s_lw2}, {i * 8192}
        s_mov_b64 exec, s[{s_wmask}:{s_wmask+1}]
        """)
        a(f"buffer_load_dwordx4 v7, s[{SW}:{SW+3}], s{s_t1} offen lds", f"c{i}")
        a(f"buffer_load_dwordx4 v8, s[{SW}:{SW+3}], s{s_t1} offen offset:1024 lds", f"c{i}")
        a("s_mov_b64 exec, -1")
        next_chunk(a)
    L.append(w0)
    return L

def dma_wq(i):
    def f(a):
        a(f"""
        s_mul_i32 s{s_t1}, s{s_c}, {64*2688}
        s_add_u32 m0, s{s_lw}, {L_WQ + i*1024}
        s_add_u32 s{s_t1}, s{s_t1}, s{s_wq}
        """)
        a(f"buffer_load_dwordx4 v9, s[{SW}:{SW+3}], s{s_t1} offen lds", f"q{i}")
        next_chunk(a)
    return f

def run_all(a, L):
    for t in L:
        t(a) if callable(t) else a(t[0], t[1])

def prologue(a, cfg):
    a(f"""
    s_cmp_ge_u32 s2, 256
    s_cbranch_scc1 L_end
    s_load_dwordx2 s[{SX}:{SX+1}], s[0:1], 0
    s_load_dwordx2 s[{SW}:{SW+1}], s[0:1], 8
    s_load_dwordx2 s[{SWS}:{SWS+1}], s[0:1], 80
    s_load_dwordx2 s[{SWR}:{SWR+1}], s[0:1], 32
    s_load_dwordx2 s[{SDB}:{SDB+1}], s[0:1], 72
    s_load_dwordx2 s[{SWO}:{SWO+1}], s[0:1], 16
    s_load_dwordx2 s[{SG}:{SG+1}], s[0:1], 40
    s_load_dwordx2 s[{SU}:{SU+1}], s[0:1], 48
    s_load_dwordx2 s[{SWD}:{SWD+1}], s[0:1], 56
    s_load_dwordx2 s[{SOUT}:{SOUT+1}], s[0:1], 64
    s_getpc_b64 s[{s_pc}:{s_pc+1}]
L_pc:
    s_lshr_b32 s{s_j}, s2, 3
    v_lshrrev_b32 v10, 6, v0
    v_and_b32 v{v_lane}, 63, v0
    v_readfirstlane_b32 s{s_w}, v10
    v_lshl_add_u32 v10, s{s_j}, 2, v10
    v_and_b32 v11, 3, v0
    v_lshl_add_u32 v10, v10, 2, v11
    v_lshlrev_b32 v10, 7, v10
    v_min_u32 v10, L_end - L_pc, v10
    """)
    a(f"global_load_dword v255, v10, s[{s_pc}:{s_pc+1}]", "pf")
    if cfg.prof:
        a(f"s_memrealtime s[{s_sv}:{s_sv+1}]")
    a(f"""
    s_and_b32 s{s_x}, s2, 7
    s_and_b32 s{s_p}, s{s_j}, 1
    s_lshr_b32 s{s_tb}, s{s_j}, 1
    s_getreg_b32 s{s_xcc}, hwreg(HW_REG_XCC_ID, 0, 4)
    s_add_u32 s{s_xcc}, s{s_xcc}, 1
    s_lshl_b32 s{s_h}, s{s_x}, 1
    s_add_u32 s{s_h}, s{s_h}, s{s_p}
    s_lshl_b32 s{s_t0}, s{s_p}, 2
    s_add_u32 s{s_t0}, s{s_t0}, s{s_tb}
    s_mul_i32 s{s_t1}, s{s_t0}, 37
    s_lshr_b32 s{s_t1}, s{s_t1}, 8
    s_mul_i32 s{s_t1}, s{s_t1}, 7
    s_sub_u32 s{s_c}, s{s_t0}, s{s_t1}
    v_lshrrev_b32 v10, 3, v{v_lane}
    v_and_b32 v11, 7, v{v_lane}
    v_lshrrev_b32 v12, 4, v{v_lane}
    v_xor_b32 v13, v11, v12
    v_lshlrev_b32 v13, 4, v13
    v_mul_u32_u24 v3, 896, v10
    v_add_u32 v3, v3, v13
    v_xor_b32 v4, 64, v3
    v_add_u32 v4, 6144, v4
    v_add_u32 v5, 12288, v3
    v_add_u32 v6, 12288, v4
    v_and_b32 v12, 1, v12
    v_lshlrev_b32 v12, 2, v12
    v_xor_b32 v12, v11, v12
    v_mul_u32_u24 v7, 2688, v10
    v_lshl_add_u32 v7, v12, 4, v7
    v_add_u32 v8, 20480, v7
    v_lshlrev_b32 v{v_l16}, 4, v{v_lane}
    s_mov_b32 s{SX+2}, {2048*896}
    s_mov_b32 s{SX+3}, 0x20000
    s_mov_b32 s{SW+2}, {448*2688}
    s_mov_b32 s{SW+3}, 0x20000
    s_mov_b32 s{SWS+2}, {WS_SIZE}
    s_mov_b32 s{SWS+3}, 0x20000
    s_cmp_eq_u32 s{s_p}, 0
    s_cselect_b32 s{SWR+2}, 896, 0
    s_mov_b32 s{SWR+3}, 0x20000
    s_mov_b32 s{s_wmask}, 0xF7F77F7F
    s_mov_b32 s{s_wmask+1}, 0xF7F77F7F
    s_lshl_b32 s{s_t2}, s{s_tb}, 2
    s_add_u32 s{s_t2}, s{s_t2}, s{s_w}
    s_mul_i32 s{s_xb}, s{s_t2}, {32*896}
    s_mul_i32 s{s_t0}, s{s_x}, 112
    s_mul_i32 s{s_t1}, s{s_w}, {16*2688}
    s_add_u32 s{s_t0}, s{s_t0}, s{s_t1}
    s_mul_i32 s{s_t1}, s{s_p}, 48
    s_add_u32 s{s_wq}, s{s_t0}, s{s_t1}
    s_mul_i32 s{s_t1}, s{s_p}, 896
    s_add_u32 s{s_t0}, s{s_t0}, s{s_t1}
    s_add_u32 s{s_wb}, s{s_t0}, 896
    s_mul_i32 s{s_lw}, s{s_w}, {WVSZ}
    s_add_u32 s{s_lw}, s{s_lw}, {L_WV}
    s_lshl_b32 s{s_lw2}, s{s_w}, 11
    s_or_b32 s{s_t0}, s{s_j}, s{s_w}
    s_cmp_eq_u32 s{s_t0}, 0
    s_cselect_b32 s{s_lead}, 0, {OOB}
    s_lshl_b32 s{s_fo}, s{s_x}, 11
    s_add_u32 s{s_fo}, s{s_fo}, {WS_F}
    s_add_u32 s{s_t3}, s{s_fo}, s{s_lead}
    s_lshl_b32 s{s_t0}, s{s_c}, 6
    v_add_u32 v10, s{s_t0}, v0
    v_add_u32 v11, 192, v10
    v_subrev_u32 v12, 448, v10
    v_subrev_u32 v13, 448, v11
    v_min_u32 v10, v10, v12
    v_min_u32 v11, v11, v13
    v_lshlrev_b32 v10, 1, v10
    v_lshlrev_b32 v11, 1, v11
    v_mov_b32 v20, 0
    v_mov_b32 v21, 0
    v_mov_b32 v22, 0
    v_mov_b32 v23, 0
    s_waitcnt lgkmcnt(0)
    """)
    if cfg.prof:
        a(f"s_mov_b32 s{s_stamp}, s{s_sv}")
    stamp(a, cfg, 1)
    a(f"buffer_store_dwordx4 v[20:23], v{v_l16}, s[{SWS}:{SWS+3}], s{s_t3} offen sc1", "clr")
    a(f"buffer_store_dwordx4 v[20:23], v{v_l16}, s[{SWS}:{SWS+3}], s{s_t3} offen offset:1024 sc1", "clr")
    a(f"buffer_load_ushort v26, v10, s[{SWR}:{SWR+3}], 0 offen", "wr")
    a(f"buffer_load_ushort v30, v11, s[{SWR}:{SWR+3}], 0 offen", "wr")
    for i in range(cfg.D):
        run_all(a, dma_chunk(i))
    a(f"""
    s_mov_b32 s{SDB+2}, 256
    s_mov_b32 s{SDB+3}, 0x20000
    s_mov_b32 s{SOUT+2}, {2048*896}
    s_mov_b32 s{SOUT+3}, 0x20000
    s_mov_b32 s{SWO+2}, {448*896}
    s_mov_b32 s{SWO+3}, 0x20000
    s_mov_b32 s{SG+2}, {448*3584}
    s_mov_b32 s{SG+3}, 0x20000
    s_mov_b32 s{SU+2}, {448*3584}
    s_mov_b32 s{SU+3}, 0x20000
    s_mov_b32 s{SWD+2}, {1792*896}
    s_mov_b32 s{SWD+3}, 0x20000
    s_mov_b32 s{s_lo}, -1
    s_mov_b32 s{s_lo+1}, 0
    s_mov_b32 s{s_ones}, 0x3f803f80
    s_mov_b32 s{s_hi16}, 0xffff0000
    s_lshl_b32 s{s_t0}, s{s_x}, 19
    s_lshl_b32 s{s_t1}, s{s_t2}, 12
    s_add_u32 s{s_t0}, s{s_t0}, s{s_t1}
    s_lshl_b32 s{s_t1}, s{s_p}, 11
    s_add_u32 s{s_kv0}, s{s_t0}, s{s_t1}
    s_add_u32 s{s_kv1}, s{s_kv0}, 0x40000
    s_lshl_b32 s{s_t0}, s{s_tb}, 17
    s_add_u32 s{s_t0}, s{s_t0}, {WS_O}
    s_lshl_b32 s{s_t1}, s{s_h}, 10
    s_add_u32 s{s_ob}, s{s_t0}, s{s_t1}
    s_lshl_b32 s{s_t1}, s{s_p}, 14
    s_add_u32 s{s_t0}, s{s_t0}, s{s_t1}
    s_lshl_b32 s{s_t1}, s{s_w}, 12
    s_add_u32 s{s_oc}, s{s_t0}, s{s_t1}
    v_lshrrev_b32 v10, 2, v{v_lane}
    v_and_b32 v11, 3, v{v_lane}
    v_mul_u32_u24 v9, 2688, v10
    v_lshl_add_u32 v9, v11, 4, v9
    v_and_b32 v14, 31, v{v_lane}
    v_lshrrev_b32 v15, 5, v{v_lane}
    v_bfe_u32 v16, v{v_lane}, 1, 3
    v_xor_b32 v16, v16, v15
    v_lshlrev_b32 v16, 4, v16
    v_lshl_add_u32 v16, v14, 7, v16
    v_add_u32 v10, s{s_lw}, v16
    v_xor_b32 v11, 32, v10
    v_xor_b32 v12, 64, v10
    v_xor_b32 v13, 96, v10
    v_bfe_u32 v16, v{v_lane}, 2, 2
    v_lshl_add_u32 v16, v15, 3, v16
    v_bfe_u32 v17, v{v_lane}, 4, 1
    v_and_b32 v18, 3, v{v_lane}
    v_lshl_add_u32 v17, v17, 2, v18          ; cgrp
    v_lshlrev_b32 v17, 3, v17                ; 8*cgrp
    s_lshl_b32 s{s_t0}, s{s_p}, 3
    v_add_u32 v18, s{s_t0}, v17
    v_and_b32 v18, 63, v18
    v_lshl_add_u32 v18, v16, 6, v18
    v_add_u32 v18, {L_WV + L_WQ}, v18
    v_add_u32 v19, {2*WVSZ}, v18
    v_add_u32 v15, 56, v17
    v_cmp_eq_u32 vcc, 56, v17
    v_mov_b32 v14, 120
    v_and_b32 v24, 8, v{v_lane}
    v_cndmask_b32 v14, v17, v14, vcc
    v_lshlrev_b32 v24, 3, v24                ; 64*bit1(row)
    v_lshl_add_u32 v24, v16, 7, v24
    v_xor_b32 v14, v14, v24
    v_xor_b32 v15, v15, v24
    v_lshrrev_b32 v16, 2, v{v_lane}
    v_xor_b32 v16, v16, v{v_lane}
    v_and_b32 v16, 4, v16
    v_cmp_eq_u32 vcc, 0, v16
    v_mov_b32 v17, s{s_ones}
    v_mov_b32 v60, 0
    v_cndmask_b32 v{SEL}, 0, v17, vcc
    v_cndmask_b32 v{SEL+1}, 0, v17, vcc
    v_cndmask_b32 v{SEL+2}, 0, v17, vcc
    v_cndmask_b32 v{SEL+3}, 0, v17, vcc
    v_mov_b32 v61, 0
    v_mov_b32 v62, 0
    v_mov_b32 v63, 0
    v_and_b32 v16, 2, v0
    v_lshlrev_b32 v16, 5, v16
    v_xor_b32 v16, 112, v16
    v_lshl_add_u32 v16, v0, 7, v16
    v_mov_b32 v24, 0
    v_mov_b32 v25, 0
    v_mov_b32 v27, 0
    v_mov_b32 v28, 0
    v_mov_b32 v29, 0
    v_mov_b32 v31, 0
    v_mov_b32 v{XOP+2}, 0
    v_mov_b32 v{XOP+3}, 0
    v_mov_b32 v{WOP0+2}, 0
    v_mov_b32 v{WOP0+3}, 0
    v_mov_b32 v{WOP1+2}, 0
    v_mov_b32 v{WOP1+3}, 0
    """)
    a.wait(vm="wr")
    a(f"ds_write_b128 v16, v[24:27]", "sp")
    a(f"ds_write_b128 v16, v[28:31] offset:{192*128}", "sp")
    a(f"""
    s_lshl_b32 s{s_t0}, s{s_x}, 2
    s_add_u32 s{s_t0}, s{s_t0}, s{s_lead}
    v_mov_b32 v20, 1
    v_cmp_eq_u32 vcc, 0, v{v_lane}
    v_mov_b32 v21, {OOB}
    v_mov_b32 v23, -1
    v_cndmask_b32 v17, v21, 0, vcc
    """)
    a(f"buffer_store_dword v20, v17, s[{SDB}:{SDB+3}], s{s_t0} offen sc1", "sigA")

def clears(a):
    L = []
    def f0(a):
        a(f"""
        s_lshl_b32 s{s_t2}, s{s_w}, 15
        s_add_u32 s{s_t2}, s{s_t2}, s{s_ob}
        """)
        a(f"buffer_store_dwordx4 v[20:23], v{v_l16}, s[{SWS}:{SWS+3}], s{s_t2} offen sc1", "clr2")
    def f1(a):
        a(f"s_add_u32 s{s_t2}, s{s_t2}, 16384")
        a(f"buffer_store_dwordx4 v[20:23], v{v_l16}, s[{SWS}:{SWS+3}], s{s_t2} offen sc1", "clr2")
    def f2(a):
        a(f"buffer_store_dwordx4 v[20:23], v31, s[{SWS}:{SWS+3}], 0 offen sc1", "clr2")
    return [f0, f1, f2]

def y_addr(a):
    a(f"""
    v_mov_b32 v20, -1
    v_mov_b32 v21, -1
    v_mov_b32 v22, -1
    s_mul_i32 s{s_t0}, s{s_x}, 28
    s_add_u32 s{s_t0}, s{s_t0}, s{s_j}
    s_lshl_b32 s{s_t0}, s{s_t0}, 8
    s_mul_i32 s{s_t1}, s{s_w}, {2*224*256}
    s_add_u32 s{s_t0}, s{s_t0}, s{s_t1}
    s_add_u32 s{s_t0}, s{s_t0}, {WS_Y}
    s_cmp_lt_u32 s{s_j}, 28
    s_cselect_b32 s{s_t0}, s{s_t0}, {OOB}
    v_and_b32 v24, 1, v{v_lane}
    v_mul_u32_u24 v24, {8*224*256}, v24
    v_bfe_u32 v25, v{v_lane}, 1, 1
    v_mul_u32_u24 v25, {224*256}, v25
    v_bfe_u32 v26, v{v_lane}, 2, 2
    v_lshl_add_u32 v24, v26, 6, v24
    v_and_b32 v26, 48, v{v_lane}
    v_add3_u32 v24, v24, v25, v26
    v_add_u32 v31, s{s_t0}, v24
    """)

def p1_main(a, cfg, typ):
    SX1, SX2 = 60, 61
    for i in range(7):
        a.c(f"chunk {i}")
        a.wait(vm=f"c{i}", lg="sp")
        a("s_barrier")
        def rd(s_):
            L = [(f"ds_read_b128 v[{XF+16*i+4*s_}:{XF+16*i+4*s_+3}], v{10+s_} offset:{(i%4)*4096}", f"r{i}_{s_}")]
            for T in (0, 1):
                for e in (0, 1):
                    r = WF + 8*s_ + 4*T + 2*e
                    L.append((f"ds_read_b64_tr_b16 a[{r}:{r+1}], v{14+T} offset:{(64*i+16*s_+4*e)*128}", f"r{i}_{s_}"))
            return L
        run_all(a, rd(0)); run_all(a, rd(1))
        extra = []
        if i + cfg.D < 7: extra = dma_chunk(i + cfg.D)
        if i == 1: extra += clears(a)
        if i + cfg.D == 7:
            def pre(a):
                a(f"buffer_load_dword v254, v30, s[{SWS}:{SWS+3}], s{s_kv0} offen", "pre")
            def sig(a):
                a(f"s_lshl_b32 s{s_t0}, s{s_x}, 2")
                a(f"buffer_load_dword v29, off, s[{SDB}:{SDB+3}], s{s_t0} sc1", "sigld")
            extra += [pre, sig]
        if i + cfg.D >= 7:
            k = i + cfg.D - 7
            nq = cfg.nq_pre
            per = -(-nq // cfg.D)
            extra += [dma_wq(q) for q in range(k*per, min(nq, (k+1)*per))]
        for s_ in range(4):
            sh = rd(s_ + 2) if s_ < 2 else []
            if s_ >= 2:
                n = (len(extra) + 1) // 2 if s_ == 2 else len(extra)
                sh = extra[:n]; extra = extra[n:]
            a.wait(lg=f"r{i}_{s_}")
            x = XF + 16*i + 4*s_
            first = (i == 0 and s_ == 0)
            mf = []
            for T, A, C in ((0, ACC0, CS0), (1, ACC1, CS1)):
                w = WF + 8*s_ + 4*T
                c0 = "0" if first else f"v[{A}:{A+15}]"
                c1 = "0" if first else f"v[{C}:{C+3}]"
                if typ == 0: mf.append(f"v_mfma_f32_32x32x16_bf16 v[{A}:{A+15}], a[{w}:{w+3}], v[{x}:{x+3}], {c0}")
                else:        mf.append(f"v_mfma_f32_32x32x16_bf16 v[{A}:{A+15}], v[{x}:{x+3}], a[{w}:{w+3}], {c0}")
                mf.append(f"v_mfma_f32_16x16x32_bf16 v[{C}:{C+3}], v[{SEL}:{SEL+3}], a[{w}:{w+3}], {c1}")
            fill = []
            for k in range(4):
                fill.append(f"v_dot2c_f32_bf16 v{SX2+2*(k&1)}, v{x+k}, v{x+k}")
                fill.append(f"v_dot2c_f32_bf16 v{SX1+2*(k&1)}, s{s_ones}, v{x+k}")
            interleave(a, mf, sh, fill, [4, 1, 3, 0])
            run_all(a, sh)
    a.c("LN statistics")
    a(f"""
    v_add_f32 v60, v60, v62
    v_add_f32 v61, v61, v63
    v_and_b32 v24, s{s_hi16}, v{CS0}
    v_and_b32 v25, s{s_hi16}, v{CS1}
    v_permlane32_swap_b32 v60, v61
    v_add_f32 v60, v60, v61
    v_sub_f32 v26, v{CS0}, v24
    v_mul_f32 v60, {hex(f2u(1.0/448))}, v60
    v_sub_f32 v27, v{CS1}, v25
    v_mov_b32 v61, v60
    v_and_b32 v62, s{s_hi16}, v26
    v_and_b32 v63, s{s_hi16}, v27
    v_permlane32_swap_b32 v60, v61           ; v60 = mean, v61 = E[x^2]
    v_fma_f32 v61, -v60, v60, v61
    v_cvt_pk_bf16_f32 v60, v60, v60          ; (m, m)
    v_max_f32 v61, 0, v61
    v_sub_f32 v26, v26, v62
    v_cvt_pk_bf16_f32 v61, v61, v61
    v_sub_f32 v27, v27, v63
    v_and_b32 v61, s{s_hi16}, v61
    v_add_f32 v61, {hex(f2u(1e-5))}, v61
    v_lshrrev_b32 v24, 16, v24
    v_cvt_pk_bf16_f32 v61, v61, v61
    v_lshrrev_b32 v25, 16, v25
    v_and_b32 v61, s{s_hi16}, v61
    v_sqrt_f32 v61, v61
    v_or_b32 v{WOP0}, v24, v62
    v_or_b32 v{WOP1}, v25, v63
    v_cvt_pk_bf16_f32 v61, v61, v61
    v_xor_b32 v24, 0x80008000, v60
    v_and_b32 v62, s{s_hi16}, v61
    v_bfi_b32 v25, s{s_hi16}, v61, v24
    v_rcp_f32 v62, v62                       ; rstd
    v_cndmask_b32 v{XOP}, 0, v24, s[{s_lo}:{s_lo+1}]
    v_cndmask_b32 v{XOP+1}, 0, v25, s[{s_lo}:{s_lo+1}]
    v_bfi_b32 v28, s{s_hi16}, v61, v60
    """)
    if typ == 0:
        a(f"""
        v_lshrrev_b32 v{WOP0+1}, 16, v26
        v_lshrrev_b32 v{WOP1+1}, 16, v27
        s_nop 0
        v_mfma_f32_32x32x16_bf16 v[{ACC0}:{ACC0+15}], v[{WOP0}:{WOP0+3}], v[{XOP}:{XOP+3}], v[{ACC0}:{ACC0+15}]
        v_mfma_f32_32x32x16_bf16 v[{ACC1}:{ACC1+15}], v[{WOP1}:{WOP1+3}], v[{XOP}:{XOP+3}], v[{ACC1}:{ACC1+15}]
        """)
    else:
        a(f"""
        v_and_b32 v24, 31, v{v_lane}
        v_cmp_eq_u32 vcc, 28, v24
        v_mov_b32 v25, 0x3f80
        v_and_b32 v60, s{s_hi16}, v62
        v_cndmask_b32 v25, 0, v25, vcc
        v_sub_f32 v61, v62, v60
        v_alignbit_b32 v{WOP0+1}, v25, v26, 16
        v_alignbit_b32 v{WOP1+1}, v25, v27, 16
        v_and_b32 v63, s{s_hi16}, v61
        v_lshrrev_b32 v60, 16, v60
        v_mfma_f32_32x32x16_bf16 v[{ACC0}:{ACC0+15}], v[{XOP}:{XOP+3}], v[{WOP0}:{WOP0+3}], v[{ACC0}:{ACC0+15}]
        v_sub_f32 v61, v61, v63
        v_or_b32 v60, v60, v63
        v_lshrrev_b32 v61, 16, v61
        v_mov_b32 v26, 0
        v_mov_b32 v27, 0
        v_cndmask_b32 v24, 0, v60, s[{s_lo}:{s_lo+1}]
        v_cndmask_b32 v25, 0, v61, s[{s_lo}:{s_lo+1}]
        v_mov_b32 v{WOP0}, s{s_ones}
        v_mov_b32 v{WOP0+1}, s{s_ones}
        s_nop 0
        v_mfma_f32_32x32x16_bf16 v[{RSB}:{RSB+15}], v[24:27], v[{WOP0}:{WOP0+3}], 0
        v_mfma_f32_32x32x16_bf16 v[{ACC1}:{ACC1+15}], v[{XOP}:{XOP+3}], v[{WOP1}:{WOP1+3}], v[{ACC1}:{ACC1+15}]
        """)
    a.wait(vm="sigld")
    a(f"""
    v_readfirstlane_b32 s{s_t0}, v29
    s_cmp_lg_u32 s{s_t0}, 0
    s_cbranch_scc0 L_sigA_{typ}
L_sigA_ok_{typ}:
    """)
    for T, A in ((0, ACC0), (1, ACC1)):
        for k in range(8):
            if typ == 0: a(f"v_pk_mul_f32 v[{A+2*k}:{A+2*k+1}], v[{A+2*k}:{A+2*k+1}], v[62:63] op_sel_hi:[1,0]")
            else:        a(f"v_pk_mul_f32 v[{A+2*k}:{A+2*k+1}], v[{A+2*k}:{A+2*k+1}], v[{RSB+2*k}:{RSB+2*k+1}]")
            a(f"v_cvt_pk_bf16_f32 v{PK+8*T+k}, v{A+2*k}, v{A+2*k+1}")
            if typ == 0 and T == 0 and k == 6:
                a(f"v_cndmask_b32 v{PK+6}, 0, v{PK+6}, s[{s_lo}:{s_lo+1}]")
            if k in (3, 7):
                f = k // 4
                a(f"buffer_store_dwordx4 v[{PK+8*T+4*f}:{PK+8*T+4*f+3}], v{v_l16}, s[{SWS}:{SWS+3}], s{s_kv0+T} offen offset:{1024*f}", "kvst")

def spin_sigA(a, cfg, typ):
    a(f"""
L_sigA_{typ}:
    s_mov_b32 s{s_cnt}, 0
    s_lshl_b32 s{s_t1}, s{s_x}, 2
L_sigA_l{typ}:
    buffer_load_dword v29, off, s[{SDB}:{SDB+3}], s{s_t1} sc1
    s_add_u32 s{s_cnt}, s{s_cnt}, 1
    s_waitcnt vmcnt(0)
    v_readfirstlane_b32 s{s_t0}, v29
    s_cmp_gt_u32 s{s_cnt}, {cfg.spin}
    s_cbranch_scc1 L_sigA_ok_{typ}
    s_cmp_lg_u32 s{s_t0}, 0
    s_cbranch_scc0 L_sigA_l{typ}
    s_branch L_sigA_ok_{typ}
    """)


v_out = 15
v_y = 31
FA = 176; FB = 192; FD = 208; FD2 = 212; ONES = 216
OF = 176
s_pad = 18
LOG2E = 1.4426950408889634
QSCALE = 28 ** -0.5 * LOG2E
L_LO = (127 - 40) << 23
L_RNG = 80 << 23

def dpp_max(t, full=True):
    L = [f"v_max_u32_dpp v{t}, v{t}, v{t} quad_perm:[1,0,3,2] row_mask:0xf bank_mask:0xf",
         f"v_max_u32_dpp v{t}, v{t}, v{t} quad_perm:[2,3,0,1] row_mask:0xf bank_mask:0xf",
         f"v_max_u32_dpp v{t}, v{t}, v{t} row_half_mirror row_mask:0xf bank_mask:0xf",
         f"v_max_u32_dpp v{t}, v{t}, v{t} row_mirror row_mask:0xf bank_mask:0xf",
         f"v_max_u32_dpp v{t}, v{t}, v{t} row_bcast:15 row_mask:0xa bank_mask:0xf"]
    if full: L.append(f"v_max_u32_dpp v{t}, v{t}, v{t} row_bcast:31 row_mask:0xc bank_mask:0xf")
    return L

def lines(s): return [x.strip() for x in s.strip().split("\n") if x.strip() and not x.strip().startswith(";")]

def q_phase(a, cfg):
    a.c("stats publish, remaining W_q, Q GEMM")
    a(f"""
    s_lshl_b32 s{s_t2}, s{s_tb}, 2
    s_add_u32 s{s_t2}, s{s_t2}, s{s_w}            ; kt
    s_lshl_b32 s{s_t0}, s{s_x}, 13
    s_lshl_b32 s{s_t1}, s{s_t2}, 7
    s_add_u32 s{s_t0}, s{s_t0}, s{s_t1}
    s_add_u32 s{s_t0}, s{s_t0}, {ST_OFF}
    s_cmp_eq_u32 s{s_p}, 0
    s_cselect_b32 s{s_qt}, s{s_t0}, {OOB}
    v_and_b32 v24, 31, v{v_lane}
    v_lshlrev_b32 v27, 2, v24
    """)
    a(f"buffer_store_dword v28, v27, s[{SWS}:{SWS+3}], s{s_qt} offen", "kvst")
    for q in range(cfg.nq_pre, 7): dma_wq(q)(a)
    a(f"""
    s_lshl_b32 s{s_t0}, s{s_w}, 7
    s_add_u32 s{s_t0}, s{s_t0}, {L_ST}
    v_add_u32 v25, s{s_t0}, v27
    """)
    a(f"ds_write_b32 v25, v28", "stw")
    fill = lines(f"""
    v_ashrrev_i32 v25, 31, v{ACC0+12}
    s_lshl_b32 s{s_t0}, s{s_t2}, 5
    v_or_b32 v25, 0x80000000, v25
    s_sub_u32 s{s_t0}, 2047, s{s_t0}
    v_xor_b32 v25, v25, v{ACC0+12}
    v_sub_u32 v24, s{s_t0}, v24
    v_and_b32 v25, 0xfffff800, v25
    v_or_b32 v25, v25, v24
    v_max_u32 v25, 1, v25
    v_cndmask_b32 v25, v25, 0, s[{s_lo}:{s_lo+1}]
    v_mov_b32 v26, v25
    """) + dpp_max(26, False) + lines(f"""
    v_readlane_b32 s{s_k1}, v26, 63
    v_mov_b32 v30, s{s_xcc}
    v_cmp_eq_u32 vcc, s{s_k1}, v25
    v_writelane_b32 v30, s{s_k1}, 1
    v_cndmask_b32 v26, v25, 0, vcc
    """) + dpp_max(26, False) + lines(f"""
    v_readlane_b32 s{s_k2}, v26, 63
    s_mul_i32 s{s_t0}, s{s_p}, 12
    s_lshl_b32 s{s_t1}, s{s_p}, 1
    s_sub_u32 s{s_t1}, 3, s{s_t1}
    v_lshl_add_u32 v29, v{v_lane}, 2, s{s_t0}
    v_cmp_gt_u32 vcc, s{s_t1}, v{v_lane}
    v_mov_b32 v24, {OOB}
    v_writelane_b32 v30, s{s_k2}, 2
    v_cndmask_b32 v29, v24, v29, vcc
    s_lshl_b32 s{s_t2}, s{s_t2}, 4
    s_add_u32 s{s_chk}, s{s_t2}, s{s_fo}          ; flag record offset (kept for the slow path)
    """)
    nkey = len(fill)
    fill2 = lines(f"""
    v_mul_u32_u24 v3, 3584, v{v_lane}
    v_lshrrev_b32 v24, 4, v{v_lane}
    v_and_b32 v25, 15, v{v_lane}
    v_mul_u32_u24 v4, 896, v24
    v_lshl_add_u32 v4, v25, 4, v4
    v_bfe_u32 v26, v{v_lane}, 2, 2
    v_lshl_add_u32 v5, v24, 3, v26
    v_lshlrev_b32 v5, 4, v5
    v_and_b32 v6, 1, v{v_lane}
    v_lshl_add_u32 v5, v6, 3, v5
    v_bfe_u32 v6, v{v_lane}, 1, 1
    v_mul_u32_u24 v6, {L_U - L_G}, v6
    v_add3_u32 v5, v5, v6, s{s_lw}
    v_and_b32 v6, 3, v{v_lane}
    v_lshlrev_b32 v6, 3, v6
    v_lshl_add_u32 v6, v24, 5, v6
    v_lshl_add_u32 v6, v26, 8, v6
    v_add_u32 v6, s{s_lw}, v6
    v_and_b32 v7, 1, v24
    v_lshlrev_b32 v7, 2, v7
    v_and_b32 v8, 7, v{v_lane}
    v_xor_b32 v8, v7, v8
    v_lshrrev_b32 v7, 3, v{v_lane}
    v_mul_u32_u24 v7, 896, v7
    v_cmp_eq_u32 vcc, 7, v8
    v_lshl_add_u32 v7, v8, 4, v7
    v_mov_b32 v8, {OOB}
    v_cndmask_b32 v7, v7, v8, vcc
    s_lshl_b32 s{s_t0}, s{s_w}, 5
    v_lshl_add_u32 v{v_out}, v24, 3, s{s_t0}
    v_cmp_gt_u32 vcc, 112, v{v_out}
    v_mad_u32_u24 v{v_out}, v25, s{s_t3}, v{v_out}
    v_add_u32 v10, s{s_lw}, v{v_l16}
    v_cndmask_b32 v{v_out}, v8, v{v_out}, vcc
    v_lshrrev_b32 v11, 2, v25
    v_cmp_eq_u32 vcc, v11, v24
    v_and_b32 v11, 3, v{v_lane}
    v_lshlrev_b32 v11, 4, v11
    v_cndmask_b32 v12, 64, v11, vcc
    v_min_u32 v11, 32, v12
    v_xor_b32 v12, 32, v12
    v_min_u32 v12, 32, v12
    v_add_u32 v11, s{s_lw}, v11
    v_add_u32 v12, s{s_lw}, v12
    v_and_b32 v13, 1, v{v_lane}
    v_lshlrev_b32 v13, 4, v13
    v_and_b32 v24, 14, v{v_lane}
    v_add3_u32 v14, v13, v24, s{s_lw}
    v_and_b32 v24, 6, v{v_lane}
    v_lshl_add_u32 v13, v24, 1, v13
    v_and_b32 v24, 8, v{v_lane}
    v_lshl_add_u32 v13, v24, 5, v13
    v_add_u32 v13, {L_FP}, v13
    """)
    a(f"s_movk_i32 s{s_t3}, 896")
    fill += fill2
    a.wait(vm=f"q{cfg.nq_pre-1}", lg="stw")
    a("s_barrier")
    def rd(k):
        i, s_ = divmod(k, 4)
        L = []
        for e in (0, 1):
            r = WF + 4*(k % 8) + 2*e
            L.append((f"ds_read_b64_tr_b16 a[{r}:{r+1}], v{18 + s_//2} offset:{(s_%2)*WVSZ + i*1024 + e*256}", f"rq{k}"))
        return L
    n1 = 4 * cfg.nq_pre
    run_all(a, rd(0)); run_all(a, rd(1))
    done_flag = False
    for k in range(28):
        if k == n1 and n1 < 28:
            a.wait(vm="q6"); a("s_barrier")
            run_all(a, rd(k)); run_all(a, rd(k+1))
        sh = rd(k + 2) if (k + 2 < 28 and not (k < n1 <= k + 2)) else []
        a.wait(lg=f"rq{k}")
        w = WF + 4*(k % 8); x = XF + 4*k
        c0 = "0" if k == 0 else f"v[{ACCQ}:{ACCQ+15}]"
        c1 = "0" if k == 0 else f"v[{CSQ}:{CSQ+3}]"
        mf = [f"v_mfma_f32_32x32x16_bf16 v[{ACCQ}:{ACCQ+15}], a[{w}:{w+3}], v[{x}:{x+3}], {c0}",
              f"v_mfma_f32_16x16x32_bf16 v[{CSQ}:{CSQ+3}], v[{SEL}:{SEL+3}], a[{w}:{w+3}], {c1}"]
        interleave(a, mf, sh, fill, [4, 1])
        if k == cfg.flag_at:
            while len(fill) > len(fill2): a(fill.pop(0))
            a.wait(vm="kvst")
            a(f"buffer_store_dword v30, v29, s[{SWS}:{SWS+3}], s{s_chk} offen", "flag")
            stamp(a, cfg, 3)
        if k == cfg.poll_at:
            a(f"buffer_load_dwordx4 v[{ACC1}:{ACC1+3}], v{v_l16}, s[{SWS}:{SWS+3}], s{s_fo} offen sc1", "poll")
    while fill: a(fill.pop(0))
    stamp(a, cfg, 4)

def poll_check(a, cfg):
    a(f"s_mov_b32 s{s_cnt}, 0")
    a(f"s_mov_b32 s{s_reg}, {WS_KVA}")
    a.wait(vm="poll")
    x = s_xcc
    a.label("L_fchk")
    if cfg.force_slow_kv:
        a("s_branch L_fretry")
    a(f"""
    v_min_u32 v24, v{ACC1+1}, v{ACC1+2}
    v_cmp_ne_u32 vcc, s{x}, v{ACC1}
    v_cmp_ne_u32 s[{s_sv}:{s_sv+1}], s{x}, v{ACC1+3}
    s_or_b64 vcc, vcc, s[{s_sv}:{s_sv+1}]
    v_cmp_eq_u32 s[{s_sv}:{s_sv+1}], 0, v24
    s_or_b64 vcc, vcc, s[{s_sv}:{s_sv+1}]
    s_cbranch_scc1 L_fretry
L_fok:
    """)

def poll_slow(a, cfg):
    a(f"""
L_fretry:
    s_add_u32 s{s_cnt}, s{s_cnt}, 1
    s_cmp_lt_u32 s{s_cnt}, {cfg.fto}
    s_cbranch_scc1 L_fagain
    s_cmp_gt_u32 s{s_cnt}, {cfg.spin}
    s_cbranch_scc1 L_fok
    s_cmp_eq_u32 s{s_cnt}, {cfg.fto}
    s_cbranch_scc0 L_gpoll
    s_add_u32 s{s_t0}, s{s_kv0}, {WS_KVB}
    s_add_u32 s{s_t1}, s{s_kv1}, {WS_KVB}
    s_add_u32 s{s_t2}, s{s_qt}, {WS_KVB}
    buffer_store_dwordx4 v[{PK}:{PK+3}], v{v_l16}, s[{SWS}:{SWS+3}], s{s_t0} offen sc1
    buffer_store_dwordx4 v[{PK+4}:{PK+7}], v{v_l16}, s[{SWS}:{SWS+3}], s{s_t0} offen offset:1024 sc1
    buffer_store_dwordx4 v[{PK+8}:{PK+11}], v{v_l16}, s[{SWS}:{SWS+3}], s{s_t1} offen sc1
    buffer_store_dwordx4 v[{PK+12}:{PK+15}], v{v_l16}, s[{SWS}:{SWS+3}], s{s_t1} offen offset:1024 sc1
    buffer_store_dword v28, v27, s[{SWS}:{SWS+3}], s{s_t2} offen sc1
    s_waitcnt vmcnt(0)
    buffer_store_dword v30, v29, s[{SWS}:{SWS+3}], s{s_chk} offen offset:1024 sc1
L_gpoll:
    buffer_load_dwordx4 v[{ACC1}:{ACC1+3}], v{v_l16}, s[{SWS}:{SWS+3}], s{s_fo} offen offset:1024 sc1
    s_waitcnt vmcnt(0)
    v_min3_u32 v24, v{ACC1}, v{ACC1+1}, v{ACC1+2}
    v_min_u32 v24, v24, v{ACC1+3}
    v_cmp_eq_u32 vcc, 0, v24
    s_cbranch_vccnz L_fagain
    s_mov_b32 s{s_reg}, {WS_KVB}
    s_branch L_fok
L_fagain:
    buffer_load_dwordx4 v[{ACC1}:{ACC1+3}], v{v_l16}, s[{SWS}:{SWS+3}], s{s_fo} offen sc1
    s_waitcnt vmcnt(0)
    s_branch L_fchk
    """)

def kv_load(kt, f):
    return (f"buffer_load_dwordx4 a[{16*kt+4*f}:{16*kt+4*f+3}], v{v_l16}, s[{SWS}:{SWS+3}], s{s_kvc} offen offset:{1024*f} sc1",
            f"k{kt}" if f < 2 else f"v{kt}")

def q_epilogue(a, cfg):
    stamp(a, cfg, 5)
    a(f"""
    s_lshl_b32 s{s_t0}, s{s_h}, 18
    s_lshl_b32 s{s_t1}, s{s_w}, 16
    s_add_u32 s{s_t0}, s{s_t0}, s{s_t1}
    s_add_u32 s{s_kvc}, s{s_t0}, s{s_reg}
    """)
    for kt in range(cfg.kv_pre):
        for f in range(4): a(*kv_load(kt, f))
        a(f"s_add_u32 s{s_kvc}, s{s_kvc}, 4096")
    a(f"""
    v_and_b32 v24, s{s_hi16}, v{CSQ}
    v_sub_f32 v26, v{CSQ}, v24
    v_lshrrev_b32 v24, 16, v24
    v_and_b32 v25, s{s_hi16}, v26
    v_sub_f32 v26, v26, v25
    v_or_b32 v{WOP1}, v24, v25
    v_lshrrev_b32 v{WOP1+1}, 16, v26
    v_mul_f32 v62, {hex(f2u(QSCALE))}, v62
    v_mov_b32 v26, v{ACC1+1}
    v_mfma_f32_32x32x16_bf16 v[{ACCQ}:{ACCQ+15}], v[{WOP1}:{WOP1+3}], v[{XOP}:{XOP+3}], v[{ACCQ}:{ACCQ+15}]
    """)
    for l in dpp_max(26): a(l)
    a(f"""
    v_readlane_b32 s{s_k1}, v26, 63
    s_add_u32 s{s_t0}, s{s_x}, 32
    s_lshl_b32 s{s_t0}, s{s_t0}, 2
    v_cmp_eq_u32 vcc, s{s_k1}, v{ACC1+1}
    s_add_u32 s{s_t0}, s{s_t0}, s{s_lead}
    v_mov_b32 v20, 0
    v_cndmask_b32 v26, v{ACC1+1}, v{ACC1+2}, vcc
    """)
    a(f"buffer_store_dword v30, v17, s[{SDB}:{SDB+3}], s{s_t0} offen sc1", "sigB")
    d = dpp_max(26)
    for k in range(8):
        a(f"v_pk_mul_f32 v[{ACCQ+2*k}:{ACCQ+2*k+1}], v[{ACCQ+2*k}:{ACCQ+2*k+1}], v[62:63] op_sel_hi:[1,0]")
        a(f"v_cvt_pk_bf16_f32 v{PK+k}, v{ACCQ+2*k}, v{ACCQ+2*k+1}")
        if k >= 6: a(f"v_cndmask_b32 v{PK+k}, 0, v{PK+k}, s[{s_lo}:{s_lo+1}]")
        if d: a(d.pop(0))
        if k in (3, 7):
            a(f"ds_write_b128 v10, v[{PK+k-3}:{PK+k}] offset:{L_QX + (k//4)*1024}", "qw")
    a(f"""
    v_readlane_b32 s{s_k2}, v26, 63
    v_mov_b32 v21, 0
    v_mov_b32 v22, 0
    v_mov_b32 v23, 0
    v_mov_b32 v24, s{s_lw}
    s_andn2_b32 s{s_ia}, 2047, s{s_k1}
    s_andn2_b32 s{s_ib}, 2047, s{s_k2}
    """)
    a(f"ds_write_b128 v24, v[20:23] offset:{L_H + 32}", "qw")
    a(f"""
    v_mov_b32 v24, s{s_ia}
    v_mov_b32 v25, s{s_ib}
    s_mov_b32 vcc_lo, 0xaaaaaaaa
    s_mov_b32 vcc_hi, 0xaaaaaaaa
    v_add_u32 v18, {L_WV}, v{v_l16}
    v_add_u32 v19, {L_WV + 2*WVSZ}, v{v_l16}
    v_cndmask_b32 v24, v24, v25, vcc
    v_and_b32 v25, 48, v{v_lane}
    v_mad_u32_u24 v25, v24, s{s_t3}, v25
    v_lshlrev_b32 v24, 2, v24
    s_lshl_b32 s{s_t0}, s{s_w}, 8
    s_lshl_b32 s{s_t1}, s{s_x}, 13
    s_add_u32 s{s_t1}, s{s_t1}, s{s_reg}
    s_add_u32 s{s_t1}, s{s_t1}, {ST_OFF}
    """)
    a.wait(lg="qw")
    a("s_barrier")
    for qt in range(4):
        for f in range(2):
            a(f"ds_read_b128 v[{QF+8*qt+4*f}:{QF+8*qt+4*f+3}], v{18 + qt//2} offset:{(qt%2)*WVSZ + L_QX + f*1024}", f"qf{qt}")
    for k in range(4):
        a(f"buffer_load_dwordx4 v[{FB+4*k}:{FB+4*k+3}], v25, s[{SX}:{SX+3}], s{s_t0} offen offset:{64*k}", "fb")
    a(f"buffer_load_dword v9, v24, s[{SWS}:{SWS+3}], s{s_t1} offen sc1", "fb")
    a(f"""
    v_add_u32 v27, 6144, v7
    v_add_u32 v28, 12288, v7
    v_add_u32 v29, 18432, v7
    v_mov_b32 v{ONES}, s{s_ones}
    v_mov_b32 v{ONES+1}, s{s_ones}
    v_mov_b32 v{ONES+2}, s{s_ones}
    v_mov_b32 v{ONES+3}, s{s_ones}
    s_cmp_eq_u32 s{s_w}, 3
    s_cselect_b32 s{s_pad+1}, 0, -1
    s_mov_b32 s{s_pad}, -1
    s_mov_b32 s{s_fail}, 0
    s_lshl_b32 s{s_t0}, s{s_tb}, 3
    s_add_u32 s{s_t0}, s{s_t0}, s{s_p}
    s_mul_i32 s{s_t0}, s{s_t0}, {16*896}
    s_mul_i32 s{s_t1}, s{s_x}, 112
    s_add_u32 s{s_outb}, s{s_t0}, s{s_t1}
    s_min_u32 s{s_j}, s{s_j}, 27
    s_mul_i32 s{s_t0}, s{s_x}, 28
    s_add_u32 s{s_j}, s{s_j}, s{s_t0}
    """)


def tile_of(t):
    return (t // 3, t % 3) if t < 48 else (t - 48, 3)

def qk(t):
    kt, qt = tile_of(t); S = S_[t % 2]; k = 16*kt; q = QF + 8*qt
    return [f"v_mfma_f32_32x32x16_bf16 v[{S}:{S+15}], a[{k}:{k+3}], v[{q}:{q+3}], 0",
            f"v_mfma_f32_32x32x16_bf16 v[{S}:{S+15}], a[{k+4}:{k+7}], v[{q+4}:{q+7}], v[{S}:{S+15}]"]
def pv(t):
    kt, qt = tile_of(t); P = P_[t % 2]; k = 16*kt + 8; o = OA + 16*qt
    c = "0" if kt == 0 else f"v[{o}:{o+15}]"
    return [f"v_mfma_f32_32x32x16_bf16 v[{o}:{o+15}], a[{k}:{k+3}], v[{P}:{P+3}], {c}",
            f"v_mfma_f32_32x32x16_bf16 v[{o}:{o+15}], a[{k+4}:{k+7}], v[{P+4}:{P+7}], v[{o}:{o+15}]"]

def W(vm=(), lg=()):
    return lambda a: a.wait(vm=vm, lg=lg)
def T(text, tag=None):
    return lambda a: a(text, tag)

def o_write(src, off, lt, tag):
    L = [T(f"ds_write_b128 v10, v[{src+4*g}:{src+4*g+3}] offset:{off + 1024*g}", tag) for g in range(4)]
    L.append(T(f"ds_write_b32 v8, v{src+12} offset:{512*lt}", tag))
    return L
def o_read(dst, dl, off, lt, tag):
    L = [T(f"ds_read_b128 v[{dl}:{dl+3}], v14 offset:{512*lt}", tag)]
    L += [T(f"ds_read_b128 v[{dst+4*w}:{dst+4*w+3}], v{12 + w//2} offset:{(w%2)*WVSZ + off}", tag) for w in range(4)]
    return L
def o_norm(dst, dl, out, chk=True):
    return lines(f"""
    v_pk_add_f32 v[{dl}:{dl+1}], v[{dl}:{dl+1}], v[{dl+2}:{dl+3}]
    v_pk_add_f32 v[{dst}:{dst+1}], v[{dst}:{dst+1}], v[{dst+4}:{dst+5}]
    v_add_f32 v{dl}, v{dl}, v{dl+1}
    v_pk_add_f32 v[{dst+2}:{dst+3}], v[{dst+2}:{dst+3}], v[{dst+6}:{dst+7}]
    v_rcp_f32 v{dl+2}, v{dl}
    v_pk_add_f32 v[{dst+8}:{dst+9}], v[{dst+8}:{dst+9}], v[{dst+12}:{dst+13}]
    v_subrev_u32 v{dl}, {hex(L_LO)}, v{dl}
    v_pk_add_f32 v[{dst+10}:{dst+11}], v[{dst+10}:{dst+11}], v[{dst+14}:{dst+15}]
    v_cndmask_b32 v{dl+2}, 0, v{dl+2}, s[{s_pad}:{s_pad+1}]
    v_pk_add_f32 v[{dst}:{dst+1}], v[{dst}:{dst+1}], v[{dst+8}:{dst+9}]
    v_pk_add_f32 v[{dst+2}:{dst+3}], v[{dst+2}:{dst+3}], v[{dst+10}:{dst+11}]
    v_cmp_le_u32 vcc, {hex(L_RNG)}, v{dl}
    v_pk_mul_f32 v[{dst}:{dst+1}], v[{dst}:{dst+1}], v[{dl+2}:{dl+3}] op_sel_hi:[1,0]
    v_pk_mul_f32 v[{dst+2}:{dst+3}], v[{dst+2}:{dst+3}], v[{dl+2}:{dl+3}] op_sel_hi:[1,0]
    v_cvt_pk_bf16_f32 v{out}, v{dst}, v{dst+1}
    v_cvt_pk_bf16_f32 v{out+1}, v{dst+2}, v{dst+3}
    v_min_u32 v{out}, -2, v{out}
    v_min_u32 v{out+1}, -2, v{out+1}
    """)

def attention(a, cfg):
    NS = 64
    sh = [[] for _ in range(NS * 4)]
    xm = [[] for _ in range(NS * 4)]
    xv = [[] for _ in range(NS * 4)]
    def put(g, items):
        for it in items:
            while sh[g]: g += 1
            sh[g].append(it); g += 1
        return g
    def putv(g, items, per):
        for i in range(0, len(items), per):
            xv[g] += items[i:i+per]; g += 1
        return g
    sh[1*4 + 1].append(W(vm="v0"))
    for kt in range(1, 16):
        sh[(3*kt - 2)*4 + 3].append(W(vm=(f"k{kt}", f"v{kt}")))
    sh[0].append(W(lg="qf2"))
    sh[2].append(W(lg="qf3"))
    nxt = cfg.kv_pre; step = 0
    while nxt < 16:
        g = step * 12
        for _ in range(cfg.kv_rate):
            if nxt < 16:
                g = put(g, [(lambda x: (lambda a: a(*x)))(kv_load(nxt, f)) for f in range(4)] + [T(f"s_add_u32 s{s_kvc}, s{s_kvc}, 4096")])
                nxt += 1
        step += 1
    g = cfg.gu_at * 12
    def gu(srd, l, e, first):
        def f(a):
            if first:
                a(f"s_mul_i32 s{s_t0}, s{s_w}, {128*3584}")
                a(f"s_lshl_b32 s{s_t1}, s{s_j}, 4")
                a(f"s_add_u32 s{s_t0}, s{s_t0}, s{s_t1}")
                a(f"s_add_u32 s{s_t1}, s{s_t0}, {64*3584}")
            a(f"s_add_u32 m0, s{s_lw}, {l + 1024*e}")
        return [f, T(f"buffer_load_dwordx4 v3, s[{srd}:{srd+3}], s{s_t0+e} offen lds", "gu")]
    k = 0
    for srd, l in ((SG, L_G), (SU, L_U)):
        for e in (0, 1):
            put(g + k * cfg.gu_gap, gu(srd, l, e, k == 0)); k += 1
    g = g + 4 * cfg.gu_gap
    def wd0(a):
        a(f"s_mul_i32 s{s_t0}, s{s_j}, {8*896}")
        a(f"s_mul_i32 s{s_t1}, s{s_w}, 224")
        a(f"s_add_u32 s{s_t0}, s{s_t0}, s{s_t1}")
        a(f"s_add_u32 s{s_t1}, s{s_t0}, {4*896 - 1024}")
        a(f"s_add_u32 m0, s{s_lw}, {L_WD}")
    g = put(g, [wd0, T(f"buffer_load_dwordx4 v4, s[{SWD}:{SWD+3}], s{s_t0} offen lds", "gu"),
                T(f"buffer_load_dwordx4 v4, s[{SWD}:{SWD+3}], s{s_t1} offen offset:1024 lds", "gu")])
    g = put(g, [T(f"s_add_u32 s{s_t0}, s{s_outb}, {32*896}"),
                T(f"buffer_load_dwordx2 v[{XV}:{XV+1}], v{v_out}, s[{SX}:{SX+3}], s{s_outb} offen", "xv"),
                T(f"buffer_load_dwordx2 v[{XV+2}:{XV+3}], v{v_out}, s[{SX}:{SX+3}], s{s_t0} offen", "xv"),
                T(f"s_add_u32 s{s_t0}, s{s_outb}, {64*896}"),
                T(f"buffer_load_dwordx2 v[{XV+4}:{XV+5}], v{v_out}, s[{SX}:{SX+3}], s{s_t0} offen", "xv"),
                T(f"s_add_u32 s{s_t0}, s{s_outb}, {96*896}"),
                T(f"buffer_load_dwordx2 v[{XV+6}:{XV+7}], v{v_out}, s[{SX}:{SX+3}], s{s_t0} offen", "xv")])
    gx = g
    gwo = max(g, cfg.wo_at * 12)
    def wo0(a):
        a(f"s_mul_i32 s{s_t2}, s{s_w}, {112*896}")
        a(f"s_mul_i32 s{s_t3}, s{s_x}, 112")
        a(f"s_add_u32 s{s_t2}, s{s_t2}, s{s_t3}")
        a(f"s_mul_i32 s{s_c}, s{s_w}, {112*128}")
    L = [wo0]
    for e in range(14):
        if e % 4 == 0:
            if e: L.append(T(f"s_add_u32 s{s_t2}, s{s_t2}, {32*896}"))
            L.append(T(f"s_add_u32 m0, s{s_c}, {1024*e}"))
        L.append(T(f"buffer_load_dwordx4 v{[7,27,28,29][e%4]}, s[{SWO}:{SWO+3}], s{s_t2} offen offset:{1024*(e%4)} lds", "wo"))
    wo_items = L
    g = cfg.ffn_at * 12
    assert g >= gx - 7, (g, gx)
    g = put(g, [W(vm=("gu", "fb"))])
    rdA = [T(f"ds_read_b64_tr_b16 v[{FA+4*k+2*e}:{FA+4*k+2*e+1}], v5 offset:{L_G + (32*k+4*e)*16}", "fa") for k in range(4) for e in (0, 1)]
    xv[g] += lines(f"""
    v_lshlrev_b32 v220, 16, v9
    v_and_b32 v222, s{s_hi16}, v9
    v_rcp_f32 v222, v222
    """)
    xv[g+1] += [f"s_lshl_b32 s{s_cnt}, s{s_w}, 10", f"s_add_u32 s{s_cnt}, s{s_cnt}, {L_FP}", f"v_add_u32 v221, s{s_cnt}, v{v_l16}"]
    g = put(g, rdA)
    g = put(g, [W(lg="fa")])
    rdD = [T(f"ds_read_b64_tr_b16 v[{224+4*m+2*e}:{224+4*m+2*e+1}], v6 offset:{L_WD + 1024*e + 112*m}", "fd") for m in (0, 1) for e in (0, 1)]
    for k in range(4):
        c0 = "0" if k == 0 else f"v[{FD}:{FD+3}]"; c1 = "0" if k == 0 else f"v[{FD2}:{FD2+3}]"
        xm[g] = [f"v_mfma_f32_16x16x32_bf16 v[{FD}:{FD+3}], v[{FA+4*k}:{FA+4*k+3}], v[{FB+4*k}:{FB+4*k+3}], {c0}", rdD[k]]; g += 1
        xm[g] = [f"v_mfma_f32_16x16x32_bf16 v[{FD2}:{FD2+3}], v[{FA+4*k}:{FA+4*k+3}], v[{ONES}:{ONES+3}], {c1}"]; g += 1
    g += 1
    xv[g] += [f"v_fma_f32 v{FD+k}, -v220, v{FD2+k}, v{FD+k}" for k in range(4)]
    g = put(g + 1, [T(f"ds_write_b128 v221, v[{FD}:{FD+3}]", "fp")])
    g = put(g + 1, [W(lg="fp"), T("s_barrier")])
    g = put(g, [T(f"ds_read2st64_b32 v[{FA+2*w}:{FA+2*w+1}], v13 offset0:{4*w} offset1:{4*w+2}", "fr") for w in range(4)])
    g = put(g + 1, [W(lg="fr")])
    act = lines(f"""
    v_pk_add_f32 v[{FA}:{FA+1}], v[{FA}:{FA+1}], v[{FA+2}:{FA+3}]
    v_pk_add_f32 v[{FA+4}:{FA+5}], v[{FA+4}:{FA+5}], v[{FA+6}:{FA+7}]
    v_pk_add_f32 v[{FA}:{FA+1}], v[{FA}:{FA+1}], v[{FA+4}:{FA+5}]
    v_pk_mul_f32 v[{FA}:{FA+1}], v[{FA}:{FA+1}], v[222:223] op_sel_hi:[1,0]
    v_mul_f32 v{FA+2}, {hex(f2u(-LOG2E))}, v{FA}
    v_exp_f32 v{FA+2}, v{FA+2}
    v_mul_f32 v{FA}, v{FA}, v{FA+1}
    v_add_f32 v{FA+2}, 1.0, v{FA+2}
    v_rcp_f32 v{FA+2}, v{FA+2}
    """)
    xv[g-1] += act
    xv[g] += [f"v_mul_f32 v{FA}, v{FA}, v{FA+2}", f"v_cvt_pk_bf16_f32 v{FA}, v{FA}, v{FA}"]
    g = put(g + 1, [T(f"ds_write_b16 v14, v{FA} offset:{L_H}", "fh"),
                    T(f"ds_read_b128 v[{FA+4}:{FA+7}], v11 offset:{L_H}", "fh"),
                    T(f"ds_read_b128 v[{FA+8}:{FA+11}], v12 offset:{L_H}", "fh")])
    g = put(g + 1, [W(lg=("fh", "fd"))])
    xm[g] = [f"v_mfma_f32_16x16x32_bf16 v[{FD}:{FD+3}], v[224:227], v[{FA+4}:{FA+7}], 0"]; g += 1
    xm[g] = [f"v_mfma_f32_16x16x32_bf16 v[{FD}:{FD+3}], v[228:231], v[{FA+8}:{FA+11}], v[{FD}:{FD+3}]"]; g += 2
    xv[g] += [f"v_min_u32 v{FD+k}, -2, v{FD+k}" for k in range(4)]
    g = put(g + 1, [T(f"buffer_store_dwordx4 v[{FD}:{FD+3}], v{v_y}, s[{SWS}:{SWS+3}], 0 offen sc1", "yst")])
    gf = g
    adr = lines(f"""
    v_and_b32 v14, 31, v{v_lane}
    s_lshl_b32 s{s_t0}, s{s_w}, 10
    v_lshlrev_b32 v14, 4, v14
    s_add_u32 s{s_t0}, s{s_t0}, {L_WV}
    v_and_b32 v11, 0xff, v14
    v_add_u32 v12, s{s_t0}, v{v_l16}
    v_add_u32 v13, {2*WVSZ}, v12
    v_and_b32 v9, 48, v{v_lane}
    v_lshl_add_u32 v11, v9, 10, v11
    v_add_u32 v14, {L_L}, v14
    v_mov_b32 v9, {OOB}
    s_lshl_b32 s{s_t0}, s{s_w}, 2
    v_cndmask_b32 v9, v9, v11, s[{s_lo}:{s_lo+1}]
    v_add_u32 v8, s{s_t0}, v14
    s_add_u32 s{s_t0}, s{s_lw}, 6144
    v_mov_b32 v3, s{s_t0}
    v_cndmask_b32 v8, v8, v3, s[{s_lo}:{s_lo+1}]
    s_lshl_b32 s{s_t0}, s{s_w}, 8
    s_add_u32 s{s_ob}, s{s_ob}, s{s_t0}
    v_lshlrev_b32 v3, 2, v{v_lane}
    """)
    g = putv(g, adr, 32)
    assert g <= 47*4 + 2, g
    g = put(47*4 + 2, o_write(OA, L_R, 0, "ow"))
    g = put(max(g, 48*4 + 2), o_write(OA + 16, L_R + 4096, 1, "ow"))
    g = put(max(g, 49*4 + 2), o_write(OA + 32, L_R + 8192, 2, "ow"))
    g = put(g, [T(f"buffer_load_dword v4, v3, s[{SDB}:{SDB+3}], 0 offen offset:128 sc1", "sigBl")])
    g = put(g, [W(lg="ow"), T("s_barrier")])
    PO = 252
    gr = []
    for qt in range(3):
        g = put(g, o_read(OA + 16*qt, 240 + 4*qt, L_R + 4096*qt, qt, f"or{qt}"))
        gr.append(g)
    for qt in range(3):
        g = gr[qt] + 1
        sh[g].append(W(lg=f"or{qt}"))
        out = PO + 2*qt if qt < 2 else OA + 4
        it = o_norm(OA + 16*qt, 240 + 4*qt, out)
        it += [f"s_cmp_lg_u64 vcc, 0", f"s_cselect_b32 s{s_t0}, {3 if qt < 2 else 4}, 0", f"s_or_b32 s{s_fail}, s{s_fail}, s{s_t0}"]
        if cfg.force_slow_sm: it += [f"s_or_b32 s{s_fail}, s{s_fail}, {cfg.force_slow_sm & 7}"]
        if qt == 1:
            it += [f"v_permlane32_swap_b32 v{PO}, v{PO+2}", f"v_permlane32_swap_b32 v{PO+1}, v{PO+3}",
                   f"s_and_b32 s{s_t0}, s{s_fail}, 3", f"s_cselect_b32 s{s_t0}, {OOB}, s{s_ob}"]
        if qt == 2:
            it += [f"v_permlane32_swap_b32 v{OA+4}, v{OA+6}", f"v_permlane32_swap_b32 v{OA+5}, v{OA+7}",
                   f"s_add_u32 s{s_t1}, s{s_ob}, 65536", f"s_and_b32 s{s_t0}, s{s_fail}, 4", f"s_cselect_b32 s{s_t0}, {OOB}, s{s_t1}"]
        xv[g] += it
        if qt == 1: sh[g+1].append(T(f"buffer_store_dwordx4 v[{PO}:{PO+3}], v11, s[{SWS}:{SWS+3}], s{s_t0} offen sc1", "ost"))
        if qt == 2: sh[g+1].append(T(f"buffer_store_dwordx4 v[{OA+4}:{OA+7}], v9, s[{SWS}:{SWS+3}], s{s_t0} offen sc1", "ost"))
    g += 2
    gw = put(gwo, wo_items)
    print("wo ends gap", gw, file=sys.stderr)
    assert g <= 63*4, g
    print("ffn ends gap", gf, "publish ends gap", g, file=sys.stderr)
    a.wait(vm="k0", lg="qf1")
    stamp(a, cfg, 6)
    for m in qk(0): a(m)
    for t in range(NS):
        a.c(f"slot {t}")
        if t == 0: mf = qk(1) + [None, None]
        elif t < NS - 1: mf = qk(t + 1) + pv(t - 1)
        else: mf = pv(t - 1) + [None, pv(t)[0]]
        S = S_[t % 2]; P = P_[t % 2]
        for q in range(4):
            g = 4*t + q
            if mf[q]: a(mf[q])
            for it in sh[g]: it(a)
            b = S + 4*q
            for k in range(3): a(f"v_exp_f32 v{b+k}, v{b+k}")
            if xm[g]:
                a(xm[g][0])
                for it in xm[g][1:]: it(a)
            a(f"v_exp_f32 v{b+3}, v{b+3}")
            a(f"v_cvt_pk_bf16_f32 v{P+2*q}, v{b}, v{b+1}")
            a(f"v_cvt_pk_bf16_f32 v{P+2*q+1}, v{b+2}, v{b+3}")
            for l in xv[g]: a(l)
        if t == 47: stamp(a, cfg, 7)
    a(f"s_mov_b32 s{s_qt}, 3")
    a(f"s_mov_b32 s{s_chk}, 8")
    a(pv(NS - 1)[1])

O3 = OA + 48
def publish_last(a, cfg):
    stamp(a, cfg, 8)
    a.label("L_pub")
    a(f"""
    s_lshl_b32 s{s_t1}, s{s_qt}, 15
    s_add_u32 s{s_t1}, s{s_t1}, s{s_ob}
    """)
    for it in o_write(O3, L_R3, 3, "ow"): it(a)
    a.wait(lg="ow")
    a("s_barrier")
    for it in o_read(O3, 240, L_R3, 3, "or3"): it(a)
    a.wait(lg="or3")
    for l in o_norm(O3, 240, 244): a(l)
    if cfg.force_slow_sm & 8: a("s_mov_b64 vcc, -1")
    a(f"""
    s_cmp_lg_u64 vcc, 0
    s_cselect_b32 s{s_t0}, s{s_chk}, 0
    v_permlane32_swap_b32 v244, v246
    v_permlane32_swap_b32 v245, v247
    s_cmp_lg_u32 s{s_t0}, 0
    s_cselect_b32 s{s_t1}, {OOB}, s{s_t1}
    s_or_b32 s{s_fail}, s{s_fail}, s{s_t0}
    """)
    a(f"buffer_store_dwordx4 v[244:247], v9, s[{SWS}:{SWS+3}], s{s_t1} offen sc1", "ost")
    a("s_cbranch_scc1 L_slow")
    stamp(a, cfg, 9)

def slow_softmax(a, cfg):
    S = S_[0]; P = P_[0]; K = S_[1]
    a(f"""
L_slow:
    s_ff1_i32_b32 s{s_qt}, s{s_fail}
    s_bitset0_b32 s{s_fail}, s{s_qt}
    s_mov_b32 s{s_chk}, 0
    s_mul_i32 s{s_t0}, s{s_qt}, {WVSZ}
    s_add_u32 s{s_t0}, s{s_t0}, {L_WV + L_QX}
    v_add_u32 v240, s{s_t0}, v{v_l16}
    ds_read_b128 v[{QF}:{QF+3}], v240
    ds_read_b128 v[{QF+4}:{QF+7}], v240 offset:1024
    s_sub_u32 s{s_t0}, s{s_kvc}, 65536
    v_mov_b32 v241, 0xff800000
    s_waitcnt vmcnt(0) lgkmcnt(0)
L_slow1:
    buffer_load_dwordx4 v[{K}:{K+3}], v{v_l16}, s[{SWS}:{SWS+3}], s{s_t0} offen sc1
    buffer_load_dwordx4 v[{K+4}:{K+7}], v{v_l16}, s[{SWS}:{SWS+3}], s{s_t0} offen offset:1024 sc1
    s_waitcnt vmcnt(0)
    v_mfma_f32_32x32x16_bf16 v[{S}:{S+15}], v[{K}:{K+3}], v[{QF}:{QF+3}], 0
    v_mfma_f32_32x32x16_bf16 v[{S}:{S+15}], v[{K+4}:{K+7}], v[{QF+4}:{QF+7}], v[{S}:{S+15}]
    """)
    for k in range(8): a(f"v_max3_f32 v241, v241, v{S+2*k}, v{S+2*k+1}")
    a(f"""
    s_add_u32 s{s_t0}, s{s_t0}, 4096
    s_cmp_lt_u32 s{s_t0}, s{s_kvc}
    s_cbranch_scc1 L_slow1
    v_mov_b32 v242, v241
    s_nop 1
    v_permlane32_swap_b32 v241, v242
    v_max_f32 v241, v241, v242
    ds_write_b32 v8, v241 offset:{L_MX - L_L}
    s_waitcnt lgkmcnt(0)
    s_barrier
    ds_read_b128 v[244:247], v14 offset:{L_MX - L_L}
    s_sub_u32 s{s_t0}, s{s_kvc}, 65536
    """)
    for k in range(16): a(f"v_mov_b32 v{O3+k}, 0")
    a(f"""
    s_waitcnt lgkmcnt(0)
    v_max3_f32 v241, v244, v245, v246
    v_max_f32 v241, v241, v247
L_slow2:
    buffer_load_dwordx4 v[{K}:{K+3}], v{v_l16}, s[{SWS}:{SWS+3}], s{s_t0} offen sc1
    buffer_load_dwordx4 v[{K+4}:{K+7}], v{v_l16}, s[{SWS}:{SWS+3}], s{s_t0} offen offset:1024 sc1
    buffer_load_dwordx4 v[{K+8}:{K+11}], v{v_l16}, s[{SWS}:{SWS+3}], s{s_t0} offen offset:2048 sc1
    buffer_load_dwordx4 v[{K+12}:{K+15}], v{v_l16}, s[{SWS}:{SWS+3}], s{s_t0} offen offset:3072 sc1
    s_waitcnt vmcnt(0)
    v_mfma_f32_32x32x16_bf16 v[{S}:{S+15}], v[{K}:{K+3}], v[{QF}:{QF+3}], 0
    v_mfma_f32_32x32x16_bf16 v[{S}:{S+15}], v[{K+4}:{K+7}], v[{QF+4}:{QF+7}], v[{S}:{S+15}]
    """)
    for k in range(16): a(f"v_sub_f32 v{S+k}, v{S+k}, v241")
    for k in range(16): a(f"v_exp_f32 v{S+k}, v{S+k}")
    for k in range(8): a(f"v_cvt_pk_bf16_f32 v{P+k}, v{S+2*k}, v{S+2*k+1}")
    a(f"""
    v_mfma_f32_32x32x16_bf16 v[{O3}:{O3+15}], v[{K+8}:{K+11}], v[{P}:{P+3}], v[{O3}:{O3+15}]
    v_mfma_f32_32x32x16_bf16 v[{O3}:{O3+15}], v[{K+12}:{K+15}], v[{P+4}:{P+7}], v[{O3}:{O3+15}]
    s_add_u32 s{s_t0}, s{s_t0}, 4096
    s_cmp_lt_u32 s{s_t0}, s{s_kvc}
    s_nop 15
    s_cbranch_scc1 L_slow2
    s_branch L_pub
    """)


XN = 32; X32 = 48; YB = 112

def o_load(a, qt, tag):
    a(f"s_add_u32 s{s_t0}, s{s_oc}, {32768*qt}")
    for hh in range(4):
        r = OF + 16*qt + 4*hh
        a(f"buffer_load_dwordx4 v[{r}:{r+3}], v{v_l16}, s[{SWS}:{SWS+3}], s{s_t0} offen offset:{1024*hh} sc1", tag)

def o_check(a, qt):
    r = OF + 16*qt
    a.wait(vm=f"ol{qt}")
    a.label(f"L_ochk{qt}")
    a(f"v_max3_u32 v24, v{r}, v{r+1}, v{r+2}")
    a(f"v_max3_u32 v25, v{r+3}, v{r+4}, v{r+5}")
    for k in range(6, 14, 4):
        a(f"v_max3_u32 v24, v24, v{r+k}, v{r+k+1}")
        a(f"v_max3_u32 v25, v25, v{r+k+2}, v{r+k+3}")
    a(f"v_max3_u32 v24, v24, v{r+14}, v{r+15}")
    a(f"v_max_u32 v24, v24, v25")
    a(f"v_cmp_eq_u32 vcc, -1, v24")
    a(f"s_cbranch_vccnz L_ort{qt}")
    a.label(f"L_ook{qt}")

def o_retry(a, cfg, qt):
    a.label(f"L_ort{qt}")
    a(f"""
    s_add_u32 s{s_cnt}, s{s_cnt}, 1
    s_cmp_gt_u32 s{s_cnt}, {cfg.spin}
    s_cbranch_scc1 L_ook{qt}
    """)
    o_load(a, qt, None)
    a("s_waitcnt vmcnt(0)")
    a(f"s_branch L_ochk{qt}")

def p3_mm(a, qt, shadow):
    D = OA + 16*qt
    for hh in range(4):
        for ct in range(4):
            c = "0" if hh == 0 else f"v[{D+4*ct}:{D+4*ct+3}]"
            a(f"v_mfma_f32_16x16x32_bf16 v[{D+4*ct}:{D+4*ct+3}], a[{16*hh+4*ct}:{16*hh+4*ct+3}], v[{OF+16*qt+4*hh}:{OF+16*qt+4*hh+3}], {c}")
            if shadow and hh >= 2: shadow.pop(0)(a)

def p3_wr(qt):
    D = OA + 16*qt; off = L_R + 4096*qt if qt < 3 else L_R3
    return [T(f"ds_write_b128 v10, v[{D+4*ct}:{D+4*ct+3}] offset:{off + 1024*ct}", "pw") for ct in range(4)]
def p3_rd(a, qt):
    D = OA + 16*qt; off = L_R + 4096*qt if qt < 3 else L_R3
    for w in range(4):
        a(f"ds_read_b128 v[{D+4*w}:{D+4*w+3}], v{12 + w//2} offset:{(w%2)*WVSZ + off}", f"pr{qt}")
def p3_fin(a, qt):
    D = OA + 16*qt; G = XN + 4*qt; X = X32 + 4*qt
    a(f"s_add_u32 s{s_t0}, s{s_outb}, {32*896*qt}")
    a.wait(lg=f"pr{qt}")
    a(f"""
    v_pk_add_f32 v[{D}:{D+1}], v[{D}:{D+1}], v[{D+4}:{D+5}]
    v_pk_add_f32 v[{D+2}:{D+3}], v[{D+2}:{D+3}], v[{D+6}:{D+7}]
    v_pk_add_f32 v[{D+8}:{D+9}], v[{D+8}:{D+9}], v[{D+12}:{D+13}]
    v_pk_add_f32 v[{D+10}:{D+11}], v[{D+10}:{D+11}], v[{D+14}:{D+15}]
    v_pk_add_f32 v[{D}:{D+1}], v[{D}:{D+1}], v[{D+8}:{D+9}]
    v_pk_add_f32 v[{D+2}:{D+3}], v[{D+2}:{D+3}], v[{D+10}:{D+11}]
    v_pk_fma_f32 v[{D}:{D+1}], v[{D}:{D+1}], v[{G}:{G+1}], v[{X}:{X+1}]
    v_pk_fma_f32 v[{D+2}:{D+3}], v[{D+2}:{D+3}], v[{G+2}:{G+3}], v[{X+2}:{X+3}]
    v_cvt_pk_bf16_f32 v{D}, v{D}, v{D+1}
    v_cvt_pk_bf16_f32 v{D+1}, v{D+2}, v{D+3}
    """)
    a(f"buffer_store_dwordx2 v[{D}:{D+1}], v{v_out}, s[{SOUT}:{SOUT+3}], s{s_t0} offen", "out")

def p3(a, cfg):
    a.c("output stage")
    a(f"s_mov_b32 s{s_cnt}, 0")
    a.wait(vm="sigBl")
    a(f"""
L_sigB_chk:
    v_cmp_eq_u32 vcc, 0, v4
    s_and_b32 s{s_t0}, vcc_lo, 0xff
    s_cbranch_scc1 L_sigB
L_sigB_ok:
    """)
    for qt in range(3): o_load(a, qt, f"ol{qt}")
    a(f"""
    v_lshrrev_b32 v24, 4, v{v_lane}
    v_bfe_u32 v25, v{v_lane}, 2, 2
    v_lshl_add_u32 v25, v24, 3, v25
    v_and_b32 v26, 3, v{v_lane}
    v_lshlrev_b32 v26, 3, v26
    v_lshl_add_u32 v25, v25, 7, v26
    v_and_b32 v26, 8, v{v_lane}
    v_lshl_add_u32 v25, v26, 3, v25
    v_cmp_gt_u32 vcc, 3, v24
    v_add_u32 v5, s{s_c}, v25
    v_mov_b32 v26, 512
    v_xor_b32 v6, 64, v5
    v_cndmask_b32 v26, 0, v26, vcc
    v_add_u32 v7, v5, v26
    v_add_u32 v27, v6, v26
    s_lshl_b32 s{s_t0}, s{s_p}, 6
    s_add_u32 s{s_t0}, s{s_t0}, {L_ST}
    v_and_b32 v24, 15, v{v_lane}
    v_lshl_add_u32 v24, v24, 2, s{s_t0}
    """)
    a(f"ds_read2_b32 v[240:241], v24 offset0:0 offset1:32", "st")
    a(f"ds_read2_b32 v[242:243], v24 offset0:64 offset1:96", "st")
    a.wait(vm=("wo", "xv"))
    tr = []
    for hh in range(4):
        for ct in range(4):
            for e in (0, 1):
                r = 16*hh + 4*ct + 2*e
                tr.append((f"ds_read_b64_tr_b16 a[{r}:{r+1}], v{[[5,6],[7,27]][e][ct//2]} offset:{hh*28*128 + 32*(ct&1)}", "wt"))
    for t in tr[:8]: a(*t)
    a.wait(lg="st")
    tr = tr[8:]
    for qt in range(4):
        st = 240 + qt; x = X32 + 4*qt; n = XN + 4*qt
        L = lines(f"""
        v_and_b32 v244, s{s_hi16}, v{st}
        v_lshlrev_b32 v{st}, 16, v{st}
        v_rcp_f32 v244, v244
        v_lshlrev_b32 v{x}, 16, v{XV+2*qt}
        v_and_b32 v{x+1}, s{s_hi16}, v{XV+2*qt}
        v_mul_f32 v246, v{st}, v244
        v_lshlrev_b32 v{x+2}, 16, v{XV+2*qt+1}
        v_and_b32 v{x+3}, s{s_hi16}, v{XV+2*qt+1}
        v_pk_fma_f32 v[{n}:{n+1}], v[{x}:{x+1}], v[244:245], v[246:247] op_sel_hi:[1,0,0] neg_lo:[0,0,1] neg_hi:[0,0,1]
        v_pk_fma_f32 v[{n+2}:{n+3}], v[{x+2}:{x+3}], v[244:245], v[246:247] op_sel_hi:[1,0,0] neg_lo:[0,0,1] neg_hi:[0,0,1]
        """)
        for i, l in enumerate(L):
            a(l)
            if tr and i < 6: a(*tr.pop(0))
    a(f"""
    s_lshl_b32 s{s_t2}, s{s_tb}, 3
    s_add_u32 s{s_t2}, s{s_t2}, s{s_p}
    s_lshr_b32 s{s_t0}, s{s_ia}, 4
    s_and_b32 s{s_t0}, s{s_t0}, 0x79
    s_cmp_eq_u32 s{s_t0}, s{s_t2}
    s_cbranch_scc1 L_spA
L_spA_ret:
    s_lshr_b32 s{s_t0}, s{s_ib}, 4
    s_and_b32 s{s_t0}, s{s_t0}, 0x79
    s_cmp_eq_u32 s{s_t0}, s{s_t2}
    s_cbranch_scc1 L_spB
L_spB_ret:
    v_mov_b32 v244, {hex(f2u(-LOG2E))}
    """)
    for qt in range(4):
        n = XN + 4*qt; z = 128 + 4*qt
        a(f"""
        v_pk_mul_f32 v[{z}:{z+1}], v[{n}:{n+1}], v[244:245] op_sel_hi:[1,0]
        v_pk_mul_f32 v[{z+2}:{z+3}], v[{n+2}:{n+3}], v[244:245] op_sel_hi:[1,0]
        v_exp_f32 v{z}, v{z}
        v_exp_f32 v{z+1}, v{z+1}
        v_exp_f32 v{z+2}, v{z+2}
        v_exp_f32 v{z+3}, v{z+3}
        v_pk_add_f32 v[{z}:{z+1}], v[{z}:{z+1}], 1.0 op_sel_hi:[1,0]
        v_pk_add_f32 v[{z+2}:{z+3}], v[{z+2}:{z+3}], 1.0 op_sel_hi:[1,0]
        v_rcp_f32 v{z}, v{z}
        v_rcp_f32 v{z+1}, v{z+1}
        v_rcp_f32 v{z+2}, v{z+2}
        v_rcp_f32 v{z+3}, v{z+3}
        v_pk_mul_f32 v[{n}:{n+1}], v[{n}:{n+1}], v[{z}:{z+1}]
        v_pk_mul_f32 v[{n+2}:{n+3}], v[{n+2}:{n+3}], v[{z+2}:{z+3}]
        """)
    stamp(a, cfg, 10)
    a.wait(lg="wt")
    pend = []
    for qt in range(3):
        o_check(a, qt)
        p3_mm(a, qt, pend)
        pend = p3_wr(qt)
    o_load(a, 3, "ol3")
    for it in pend: it(a)
    a.wait(lg="pw")
    a("s_barrier")
    for qt in range(3): p3_rd(a, qt)
    for qt in range(3): p3_fin(a, qt)
    stamp(a, cfg, 11)
    o_check(a, 3)
    stamp(a, cfg, 12)
    p3_mm(a, 3, [])
    for it in p3_wr(3): it(a)
    a.wait(lg="pw")
    a("s_barrier")
    p3_rd(a, 3)
    p3_fin(a, 3)

def special(a, cfg):
    a(f"""
L_sigB:
    s_add_u32 s{s_cnt}, s{s_cnt}, 1
    s_cmp_gt_u32 s{s_cnt}, {cfg.spin}
    s_cbranch_scc1 L_sigB_ok
    buffer_load_dword v4, v3, s[{SDB}:{SDB+3}], 0 offen offset:128 sc1
    s_waitcnt vmcnt(0)
    s_branch L_sigB_chk
L_spA:
    s_mov_b32 s{s_qt}, 0
    s_branch L_sp
L_spB:
    s_mov_b32 s{s_qt}, 1
    s_mov_b32 s{s_ia}, s{s_ib}
    s_mov_b32 s{s_k1}, s{s_k2}
L_sp:
    v_and_b32 v24, 15, v{v_lane}
    v_cmp_gt_u32 vcc, 14, v24
    v_mov_b32 v25, {OOB}
    s_lshl_b32 s{s_t0}, s{s_qt}, 3
    s_add_u32 s{s_t0}, s{s_t0}, s{s_x}
    s_mul_i32 s{s_t0}, s{s_t0}, {224*256}
    s_lshl_b32 s{s_t1}, s{s_w}, 10
    s_add_u32 s{s_t0}, s{s_t0}, s{s_t1}
    s_add_u32 s{s_t3}, s{s_t0}, {WS_Y}
    v_cndmask_b32 v25, v25, v{v_l16}, vcc
L_sp_ld:
    """)
    for i in range(14):
        a(f"s_add_u32 s{s_t0}, s{s_t3}, {4096*i}")
        a(f"buffer_load_dwordx4 v[{YB+4*i}:{YB+4*i+3}], v25, s[{SWS}:{SWS+3}], s{s_t0} offen sc1")
    a(f"""
    s_add_u32 s{s_cnt}, s{s_cnt}, 1
    v_mov_b32 v26, 0
    s_waitcnt vmcnt(0)
    """)
    for k in range(28): a(f"v_max3_u32 v26, v26, v{YB+2*k}, v{YB+2*k+1}")
    a(f"""
    v_cmp_eq_u32 vcc, -1, v26
    s_cmp_gt_u32 s{s_cnt}, {cfg.spin}
    s_cbranch_scc1 L_sp_go
    s_cbranch_vccnz L_sp_ld
L_sp_go:
    """)
    n = 14
    while n > 1:
        h = n // 2
        for i in range(h):
            d = YB + 4*i; e = YB + 4*(n - 1 - i)
            a(f"v_pk_add_f32 v[{d}:{d+1}], v[{d}:{d+1}], v[{e}:{e+1}]")
            a(f"v_pk_add_f32 v[{d+2}:{d+3}], v[{d+2}:{d+3}], v[{e+2}:{e+3}]")
        n -= h
    a(f"""
    s_lshl_b32 s{s_t0}, s{s_qt}, 10
    s_add_u32 s{s_t0}, s{s_t0}, {L_FP}
    s_lshl_b32 s{s_t1}, s{s_w}, 8
    s_add_u32 s{s_t1}, s{s_t1}, s{s_t0}
    v_permlane32_swap_b32 v{YB}, v{YB+2}
    v_permlane32_swap_b32 v{YB+1}, v{YB+3}
    v_add_f32 v{YB}, v{YB}, v{YB+2}
    v_add_f32 v{YB+1}, v{YB+1}, v{YB+3}
    v_lshrrev_b32 v26, 4, v{v_lane}
    v_lshl_add_u32 v25, v24, 4, s{s_t1}
    v_permlane16_swap_b32 v{YB}, v{YB+1}
    v_lshl_add_u32 v25, v26, 2, v25
    v_add_f32 v{YB}, v{YB}, v{YB+1}
    ds_write_b32 v25, v{YB}
    s_lshl_b32 s{s_t1}, s{s_w}, 6
    s_add_u32 s{s_t1}, s{s_t1}, s{s_t0}
    v_lshl_add_u32 v25, v26, 4, s{s_t1}
    ; sigmoid(r)
    s_and_b32 s{s_t0}, s{s_k1}, 0xfffff800
    s_cmp_lt_i32 s{s_t0}, 0
    s_cselect_b32 s{s_t1}, 0x80000000, -1
    s_xor_b32 s{s_t0}, s{s_t0}, s{s_t1}
    v_mov_b32 v26, s{s_t0}
    v_cvt_pk_bf16_f32 v26, v26, v26
    v_and_b32 v26, s{s_hi16}, v26
    v_mul_f32 v26, {hex(f2u(-LOG2E))}, v26
    v_exp_f32 v26, v26
    s_and_b32 s{s_t0}, s{s_ia}, 15
    v_add_f32 v26, 1.0, v26
    v_rcp_f32 v26, v26
    v_cmp_eq_u32 s[{s_sv}:{s_sv+1}], s{s_t0}, v24
    s_waitcnt lgkmcnt(0)
    s_barrier
    ds_read_b128 v[{YB}:{YB+3}], v25
    ds_read_b128 v[{YB+4}:{YB+7}], v25 offset:256
    ds_read_b128 v[{YB+8}:{YB+11}], v25 offset:512
    ds_read_b128 v[{YB+12}:{YB+15}], v25 offset:768
    s_bfe_u32 s{s_t0}, s{s_ia}, 0x20005
    s_waitcnt lgkmcnt(0)
    v_pk_add_f32 v[{YB}:{YB+1}], v[{YB}:{YB+1}], v[{YB+4}:{YB+5}]
    v_pk_add_f32 v[{YB+2}:{YB+3}], v[{YB+2}:{YB+3}], v[{YB+6}:{YB+7}]
    v_pk_add_f32 v[{YB+8}:{YB+9}], v[{YB+8}:{YB+9}], v[{YB+12}:{YB+13}]
    v_pk_add_f32 v[{YB+10}:{YB+11}], v[{YB+10}:{YB+11}], v[{YB+14}:{YB+15}]
    v_pk_add_f32 v[{YB}:{YB+1}], v[{YB}:{YB+1}], v[{YB+8}:{YB+9}]
    v_pk_add_f32 v[{YB+2}:{YB+3}], v[{YB+2}:{YB+3}], v[{YB+10}:{YB+11}]
    """)
    for qt in range(4):
        n = XN + 4*qt
        a(f"""
        s_cmp_eq_u32 s{s_t0}, {qt}
        s_cselect_b64 exec, s[{s_sv}:{s_sv+1}], 0
        v_pk_fma_f32 v[{n}:{n+1}], v[{YB}:{YB+1}], v[26:27], v[{n}:{n+1}] op_sel_hi:[1,0,1]
        v_pk_fma_f32 v[{n+2}:{n+3}], v[{YB+2}:{YB+3}], v[26:27], v[{n+2}:{n+3}] op_sel_hi:[1,0,1]
        """)
    a(f"""
    s_mov_b64 exec, -1
    s_cmp_eq_u32 s{s_qt}, 0
    s_cbranch_scc1 L_spA_ret
    s_branch L_spB_ret
    """)

def prof_out(a, cfg):
    a("s_waitcnt vmcnt(0)")
    stamp(a, cfg, 13)
    a(f"""
    s_lshl_b32 s{s_t0}, s2, 2
    s_add_u32 s{s_t0}, s{s_t0}, s{s_w}
    s_lshl_b32 s{s_t0}, s{s_t0}, 6
    s_add_u32 s{s_t0}, s{s_t0}, {WS_PROF}
    v_mov_b32 v24, s{s_cnt}
    """)
    for i in range(14): a(f"v_writelane_b32 v24, s{s_stamp+i}, {i}")
    a(f"""
    v_lshlrev_b32 v25, 2, v{v_lane}
    s_mov_b64 exec, 0xffff
    buffer_store_dword v24, v25, s[{SWS}:{SWS+3}], s{s_t0} offen
    """)

HEADER = open(__file__.replace("gen/gen.py", "cdna_kernels/recurrent_scan__mha_block__moe_arch_mod__prompt.s.ref").replace("gen.py", "../cdna_kernels/recurrent_scan__mha_block__moe_arch_mod__prompt.s.ref") if "gen/gen.py" not in __file__ else __file__.replace("gen/gen.py", "cdna_kernels/recurrent_scan__mha_block__moe_arch_mod__prompt.s.ref")).read().split("; Override launch")[0]

def build(cfg):
    a = Asm(); a.verbose = getattr(cfg, "verbose", False)
    prologue(a, cfg)
    y_addr(a)
    a(f"""
    v_lshrrev_b32 v24, 5, v{v_lane}
    v_and_b32 v25, 31, v{v_lane}
    v_lshlrev_b32 v24, 18, v24
    v_lshl_add_u32 v30, v25, 6, v24
    s_cmp_eq_u32 s{s_p}, 0
    s_cbranch_scc0 L_typeV
    """)
    snap = (list(a.vm), list(a.lg))
    p1_main(a, cfg, 0)
    a("s_branch L_join")
    end0 = (list(a.vm), list(a.lg))
    a.vm, a.lg = snap
    a.label("L_typeV")
    p1_main(a, cfg, 1)
    assert end0 == (a.vm, a.lg)
    a.label("L_join")
    stamp(a, cfg, 2)
    q_phase(a, cfg)
    poll_check(a, cfg)
    q_epilogue(a, cfg)
    attention(a, cfg)
    publish_last(a, cfg)
    p3(a, cfg)
    if cfg.prof: prof_out(a, cfg)
    a("s_endpgm")
    spin_sigA(a, cfg, 0); spin_sigA(a, cfg, 1)
    poll_slow(a, cfg)
    for qt in range(4): o_retry(a, cfg, qt)
    special(a, cfg)
    slow_softmax(a, cfg)
    a.label("L_end")
    a("s_endpgm")
    print("auto nops:", a.nops, file=sys.stderr)
    return HEADER + f"""; Generated by gen/gen.py (hand-written generator). One persistent workgroup per CU.
; @launch grid=(256,1,1) block=(256,1,1) lds={LDS_SIZE}
.amdgcn_target "amdgcn-amd-amdhsa--gfx950"
.text
.globl {NAME}
.p2align 8
.type {NAME},@function
{NAME}:
""" + a.text() + f""".section .rodata,"a"
.p2align 6
.amdhsa_kernel {NAME}
  .amdhsa_next_free_vgpr 512
  .amdhsa_next_free_sgpr 102
  .amdhsa_accum_offset 256
  .amdhsa_group_segment_fixed_size 0
  .amdhsa_kernarg_size 88
  .amdhsa_user_sgpr_count 2
  .amdhsa_user_sgpr_kernarg_segment_ptr 1
  .amdhsa_system_sgpr_workgroup_id_x 1
.end_amdhsa_kernel
"""

if __name__ == "__main__":
    cfg = Cfg()
    out = sys.argv[1]
    for kv in sys.argv[2:]:
        k, val = kv.split("=")
        setattr(cfg, k, int(val))
    open(out, "w").write(build(cfg))
```

```python
import sys, math, struct
from asmlib import *

NAME = "recurrent_scan__mha_block__moe_arch_mod__prompt_kernel"

def f2u(x): return struct.unpack('<I', struct.pack('<f', x))[0]

KV_SZ   = 0x420000
WS_KVA  = 0
WS_KVB  = KV_SZ
ST_OFF  = 0x400000
WS_O    = 0x900000
WS_Y    = 0xB00000
WS_F    = 0xC00000
WS_PROF = 0xD00000
WS_DBG  = 0xE00000
WS_SIZE = 0x1000000
OOB     = 0x40000000

L_W   = 0
L_WV  = 57344
WVSZ  = 24576
L_WQ  = 16384
L_QX  = 0
L_G   = 2048
L_U   = 4160
L_WD  = 6400
L_H   = 9472
L_R   = 10240
L_R3  = 2048
L_MISC = L_WV + 4 * WVSZ
L_ST  = L_MISC
L_L   = L_MISC + 512
L_YR  = L_MISC + 2560
L_MX  = L_MISC + 3584
L_FP  = L_MISC + 4096
LDS_SIZE = 163840

SX, SW, SWS, SWR, SDB, SOUT, SWO, SG, SU, SWD = 28, 32, 36, 40, 44, 48, 52, 56, 60, 64
s_pc = 26
s_w, s_x, s_j, s_p, s_tb, s_h, s_c, s_xcc = 3, 4, 5, 6, 7, 8, 9, 10
s_t0, s_t1, s_t2, s_t3 = 11, 12, 13, 14
s_xb, s_wb, s_lw = 15, 16, 17
s_wmask = 18
s_lo = 20
s_ones = 22
s_kv0, s_kv1 = 23, 24
s_fo = 25
s_kvc = 68
s_reg = 69
s_cnt = 70
s_k1, s_k2 = 71, 72
s_ia, s_ib = 73, 74
s_fail = 75
s_qt = 76
s_chk = 77
s_ob = 78
s_oc = 79
s_lw2 = 80
s_hi16 = 81
s_sv = 82
s_wq = 84
s_outb = 85
s_lead = 86
s_stamp = 88

v_lane = 1
v_l16 = 2
XF = 128; ACC0 = 64; ACC1 = 80; ACCQ = 96; RSB = 112; PK = 240
CS0 = 32; CS1 = 36; CSQ = 40; SEL = 44; XOP = 48; WOP0 = 52; WOP1 = 56
WF = 192
QF = 32; OA = 64; S_ = [128, 144]; P_ = [160, 168]
XV = 16; GV = 24

class Cfg:
    prof = False
    dbg = False
    D = 3
    spin = 200000
    fto = 64
    force_slow_kv = False
    force_slow_sm = False
    nq_pre = 3
    flag_at = 8
    poll_at = 20
    stop = 99
    probe = -1
    kv_pre = 3
    kv_rate = 2
    gu_at = 7
    ffn_at = 12
    wo_at = 11
    gu_gap = 12

def stamp(a, cfg, i):
    if cfg.prof and (cfg.probe < 0 or cfg.probe == i):
        a(f"s_waitcnt lgkmcnt(0)")
        a(f"s_memrealtime s[{s_sv}:{s_sv+1}]")
        a(f"s_waitcnt lgkmcnt(0)")
        a(f"s_mov_b32 s{s_stamp+i}, s{s_sv}")

def interleave(a, mf, shadow, fill, per_gap):
    for i, m in enumerate(mf):
        a(m)
        if shadow:
            t = shadow.pop(0)
            t(a) if callable(t) else a(t[0], t[1])
        for _ in range(per_gap[i]):
            if fill: a(fill.pop(0))

def next_chunk(a):
    a(f"""
    s_add_u32 s{s_c}, s{s_c}, 1
    s_cmp_eq_u32 s{s_c}, 7
    s_cselect_b32 s{s_c}, 0, s{s_c}
    """)

def dma_chunk(i):
    L = []
    def x0(a):
        a(f"""
        s_lshl_b32 s{s_t0}, s{s_c}, 7
        s_add_u32 s{s_t0}, s{s_t0}, s{s_xb}
        s_add_u32 m0, s{s_lw}, {(i % 4) * 4096}
        s_mul_i32 s{s_t1}, s{s_c}, {64*2688}
        """)
        a(f"buffer_load_dwordx4 v3, s[{SX}:{SX+3}], s{s_t0} offen lds", f"c{i}")
    L.append(x0)
    for rb in (1, 2, 3):
        L.append((f"buffer_load_dwordx4 v{3+rb}, s[{SX}:{SX+3}], s{s_t0} offen offset:{1024*rb} lds", f"c{i}"))
    def w0(a):
        a(f"""
        s_add_u32 s{s_t1}, s{s_t1}, s{s_wb}
        s_add_u32 m0, s{s_lw2}, {i * 8192}
        s_mov_b64 exec, s[{s_wmask}:{s_wmask+1}]
        """)
        a(f"buffer_load_dwordx4 v7, s[{SW}:{SW+3}], s{s_t1} offen lds", f"c{i}")
        a(f"buffer_load_dwordx4 v8, s[{SW}:{SW+3}], s{s_t1} offen offset:1024 lds", f"c{i}")
        a("s_mov_b64 exec, -1")
        next_chunk(a)
    L.append(w0)
    return L

def dma_wq(i):
    def f(a):
        a(f"""
        s_mul_i32 s{s_t1}, s{s_c}, {64*2688}
        s_add_u32 m0, s{s_lw}, {L_WQ + i*1024}
        s_add_u32 s{s_t1}, s{s_t1}, s{s_wq}
        """)
        a(f"buffer_load_dwordx4 v9, s[{SW}:{SW+3}], s{s_t1} offen lds", f"q{i}")
        next_chunk(a)
    return f

def run_all(a, L):
    for t in L:
        t(a) if callable(t) else a(t[0], t[1])

def prologue(a, cfg):
    a(f"""
    s_cmp_ge_u32 s2, 256
    s_cbranch_scc1 L_end
    s_load_dwordx2 s[{SX}:{SX+1}], s[0:1], 0
    s_load_dwordx2 s[{SW}:{SW+1}], s[0:1], 8
    s_load_dwordx2 s[{SWS}:{SWS+1}], s[0:1], 80
    s_load_dwordx2 s[{SWR}:{SWR+1}], s[0:1], 32
    s_load_dwordx2 s[{SDB}:{SDB+1}], s[0:1], 72
    s_load_dwordx2 s[{SWO}:{SWO+1}], s[0:1], 16
    s_load_dwordx2 s[{SG}:{SG+1}], s[0:1], 40
    s_load_dwordx2 s[{SU}:{SU+1}], s[0:1], 48
    s_load_dwordx2 s[{SWD}:{SWD+1}], s[0:1], 56
    s_load_dwordx2 s[{SOUT}:{SOUT+1}], s[0:1], 64
    s_getpc_b64 s[{s_pc}:{s_pc+1}]
L_pc:
    s_lshr_b32 s{s_j}, s2, 3
    v_lshrrev_b32 v10, 6, v0
    v_and_b32 v{v_lane}, 63, v0
    v_readfirstlane_b32 s{s_w}, v10
    v_lshl_add_u32 v10, s{s_j}, 2, v10
    v_and_b32 v11, 3, v0
    v_lshl_add_u32 v10, v10, 2, v11
    v_lshlrev_b32 v10, 7, v10
    v_min_u32 v10, L_end - L_pc, v10
    """)
    a(f"global_load_dword v255, v10, s[{s_pc}:{s_pc+1}]", "pf")
    if cfg.prof:
        a(f"s_memrealtime s[{s_sv}:{s_sv+1}]")
    a(f"""
    s_and_b32 s{s_x}, s2, 7
    s_and_b32 s{s_p}, s{s_j}, 1
    s_lshr_b32 s{s_tb}, s{s_j}, 1
    s_getreg_b32 s{s_xcc}, hwreg(HW_REG_XCC_ID, 0, 4)
    s_add_u32 s{s_xcc}, s{s_xcc}, 1
    s_lshl_b32 s{s_h}, s{s_x}, 1
    s_add_u32 s{s_h}, s{s_h}, s{s_p}
    s_lshl_b32 s{s_t0}, s{s_p}, 2
    s_add_u32 s{s_t0}, s{s_t0}, s{s_tb}
    s_mul_i32 s{s_t1}, s{s_t0}, 37
    s_lshr_b32 s{s_t1}, s{s_t1}, 8
    s_mul_i32 s{s_t1}, s{s_t1}, 7
    s_sub_u32 s{s_c}, s{s_t0}, s{s_t1}
    v_lshrrev_b32 v10, 3, v{v_lane}
    v_and_b32 v11, 7, v{v_lane}
    v_lshrrev_b32 v12, 4, v{v_lane}
    v_xor_b32 v13, v11, v12
    v_lshlrev_b32 v13, 4, v13
    v_mul_u32_u24 v3, 896, v10
    v_add_u32 v3, v3, v13
    v_xor_b32 v4, 64, v3
    v_add_u32 v4, 6144, v4
    v_add_u32 v5, 12288, v3
    v_add_u32 v6, 12288, v4
    v_and_b32 v12, 1, v12
    v_lshlrev_b32 v12, 2, v12
    v_xor_b32 v12, v11, v12
    v_mul_u32_u24 v7, 2688, v10
    v_lshl_add_u32 v7, v12, 4, v7
    v_add_u32 v8, 20480, v7
    v_lshlrev_b32 v{v_l16}, 4, v{v_lane}
    s_mov_b32 s{SX+2}, {2048*896}
    s_mov_b32 s{SX+3}, 0x20000
    s_mov_b32 s{SW+2}, {448*2688}
    s_mov_b32 s{SW+3}, 0x20000
    s_mov_b32 s{SWS+2}, {WS_SIZE}
    s_mov_b32 s{SWS+3}, 0x20000
    s_cmp_eq_u32 s{s_p}, 0
    s_cselect_b32 s{SWR+2}, 896, 0
    s_mov_b32 s{SWR+3}, 0x20000
    s_mov_b32 s{s_wmask}, 0xF7F77F7F
    s_mov_b32 s{s_wmask+1}, 0xF7F77F7F
    s_lshl_b32 s{s_t2}, s{s_tb}, 2
    s_add_u32 s{s_t2}, s{s_t2}, s{s_w}
    s_mul_i32 s{s_xb}, s{s_t2}, {32*896}
    s_mul_i32 s{s_t0}, s{s_x}, 112
    s_mul_i32 s{s_t1}, s{s_w}, {16*2688}
    s_add_u32 s{s_t0}, s{s_t0}, s{s_t1}
    s_mul_i32 s{s_t1}, s{s_p}, 48
    s_add_u32 s{s_wq}, s{s_t0}, s{s_t1}
    s_mul_i32 s{s_t1}, s{s_p}, 896
    s_add_u32 s{s_t0}, s{s_t0}, s{s_t1}
    s_add_u32 s{s_wb}, s{s_t0}, 896
    s_mul_i32 s{s_lw}, s{s_w}, {WVSZ}
    s_add_u32 s{s_lw}, s{s_lw}, {L_WV}
    s_lshl_b32 s{s_lw2}, s{s_w}, 11
    s_or_b32 s{s_t0}, s{s_j}, s{s_w}
    s_cmp_eq_u32 s{s_t0}, 0
    s_cselect_b32 s{s_lead}, 0, {OOB}
    s_lshl_b32 s{s_fo}, s{s_x}, 11
    s_add_u32 s{s_fo}, s{s_fo}, {WS_F}
    s_add_u32 s{s_t3}, s{s_fo}, s{s_lead}
    s_lshl_b32 s{s_t0}, s{s_c}, 6
    v_add_u32 v10, s{s_t0}, v0
    v_add_u32 v11, 192, v10
    v_subrev_u32 v12, 448, v10
    v_subrev_u32 v13, 448, v11
    v_min_u32 v10, v10, v12
    v_min_u32 v11, v11, v13
    v_lshlrev_b32 v10, 1, v10
    v_lshlrev_b32 v11, 1, v11
    v_mov_b32 v20, 0
    v_mov_b32 v21, 0
    v_mov_b32 v22, 0
    v_mov_b32 v23, 0
    s_waitcnt lgkmcnt(0)
    """)
    if cfg.prof:
        a(f"s_mov_b32 s{s_stamp}, s{s_sv}")
    stamp(a, cfg, 1)
    a(f"buffer_store_dwordx4 v[20:23], v{v_l16}, s[{SWS}:{SWS+3}], s{s_t3} offen sc1", "clr")
    a(f"buffer_store_dwordx4 v[20:23], v{v_l16}, s[{SWS}:{SWS+3}], s{s_t3} offen offset:1024 sc1", "clr")
    a(f"buffer_load_ushort v26, v10, s[{SWR}:{SWR+3}], 0 offen", "wr")
    a(f"buffer_load_ushort v30, v11, s[{SWR}:{SWR+3}], 0 offen", "wr")
    for i in range(cfg.D):
        run_all(a, dma_chunk(i))
    a(f"""
    s_mov_b32 s{SDB+2}, 256
    s_mov_b32 s{SDB+3}, 0x20000
    s_mov_b32 s{SOUT+2}, {2048*896}
    s_mov_b32 s{SOUT+3}, 0x20000
    s_mov_b32 s{SWO+2}, {448*896}
    s_mov_b32 s{SWO+3}, 0x20000
    s_mov_b32 s{SG+2}, {448*3584}
    s_mov_b32 s{SG+3}, 0x20000
    s_mov_b32 s{SU+2}, {448*3584}
    s_mov_b32 s{SU+3}, 0x20000
    s_mov_b32 s{SWD+2}, {1792*896}
    s_mov_b32 s{SWD+3}, 0x20000
    s_mov_b32 s{s_lo}, -1
    s_mov_b32 s{s_lo+1}, 0
    s_mov_b32 s{s_ones}, 0x3f803f80
    s_mov_b32 s{s_hi16}, 0xffff0000
    s_lshl_b32 s{s_t0}, s{s_x}, 19
    s_lshl_b32 s{s_t1}, s{s_t2}, 12
    s_add_u32 s{s_t0}, s{s_t0}, s{s_t1}
    s_lshl_b32 s{s_t1}, s{s_p}, 11
    s_add_u32 s{s_kv0}, s{s_t0}, s{s_t1}
    s_add_u32 s{s_kv1}, s{s_kv0}, 0x40000
    s_lshl_b32 s{s_t0}, s{s_tb}, 17
    s_add_u32 s{s_t0}, s{s_t0}, {WS_O}
    s_lshl_b32 s{s_t1}, s{s_h}, 10
    s_add_u32 s{s_ob}, s{s_t0}, s{s_t1}
    s_lshl_b32 s{s_t1}, s{s_p}, 14
    s_add_u32 s{s_t0}, s{s_t0}, s{s_t1}
    s_lshl_b32 s{s_t1}, s{s_w}, 12
    s_add_u32 s{s_oc}, s{s_t0}, s{s_t1}
    v_lshrrev_b32 v10, 2, v{v_lane}
    v_and_b32 v11, 3, v{v_lane}
    v_mul_u32_u24 v9, 2688, v10
    v_lshl_add_u32 v9, v11, 4, v9
    v_and_b32 v14, 31, v{v_lane}
    v_lshrrev_b32 v15, 5, v{v_lane}
    v_bfe_u32 v16, v{v_lane}, 1, 3
    v_xor_b32 v16, v16, v15
    v_lshlrev_b32 v16, 4, v16
    v_lshl_add_u32 v16, v14, 7, v16
    v_add_u32 v10, s{s_lw}, v16
    v_xor_b32 v11, 32, v10
    v_xor_b32 v12, 64, v10
    v_xor_b32 v13, 96, v10
    v_bfe_u32 v16, v{v_lane}, 2, 2
    v_lshl_add_u32 v16, v15, 3, v16
    v_bfe_u32 v17, v{v_lane}, 4, 1
    v_and_b32 v18, 3, v{v_lane}
    v_lshl_add_u32 v17, v17, 2, v18          ; cgrp
    v_lshlrev_b32 v17, 3, v17                ; 8*cgrp
    s_lshl_b32 s{s_t0}, s{s_p}, 3
    v_add_u32 v18, s{s_t0}, v17
    v_and_b32 v18, 63, v18
    v_lshl_add_u32 v18, v16, 6, v18
    v_add_u32 v18, {L_WV + L_WQ}, v18
    v_add_u32 v19, {2*WVSZ}, v18
    v_add_u32 v15, 56, v17
    v_cmp_eq_u32 vcc, 56, v17
    v_mov_b32 v14, 120
    v_and_b32 v24, 8, v{v_lane}
    v_cndmask_b32 v14, v17, v14, vcc
    v_lshlrev_b32 v24, 3, v24                ; 64*bit1(row)
    v_lshl_add_u32 v24, v16, 7, v24
    v_xor_b32 v14, v14, v24
    v_xor_b32 v15, v15, v24
    v_lshrrev_b32 v16, 2, v{v_lane}
    v_xor_b32 v16, v16, v{v_lane}
    v_and_b32 v16, 4, v16
    v_cmp_eq_u32 vcc, 0, v16
    v_mov_b32 v17, s{s_ones}
    v_mov_b32 v60, 0
    v_cndmask_b32 v{SEL}, 0, v17, vcc
    v_cndmask_b32 v{SEL+1}, 0, v17, vcc
    v_cndmask_b32 v{SEL+2}, 0, v17, vcc
    v_cndmask_b32 v{SEL+3}, 0, v17, vcc
    v_mov_b32 v61, 0
    v_mov_b32 v62, 0
    v_mov_b32 v63, 0
    v_and_b32 v16, 2, v0
    v_lshlrev_b32 v16, 5, v16
    v_xor_b32 v16, 112, v16
    v_lshl_add_u32 v16, v0, 7, v16
    v_mov_b32 v24, 0
    v_mov_b32 v25, 0
    v_mov_b32 v27, 0
    v_mov_b32 v28, 0
    v_mov_b32 v29, 0
    v_mov_b32 v31, 0
    v_mov_b32 v{XOP+2}, 0
    v_mov_b32 v{XOP+3}, 0
    v_mov_b32 v{WOP0+2}, 0
    v_mov_b32 v{WOP0+3}, 0
    v_mov_b32 v{WOP1+2}, 0
    v_mov_b32 v{WOP1+3}, 0
    """)
    a.wait(vm="wr")
    a(f"ds_write_b128 v16, v[24:27]", "sp")
    a(f"ds_write_b128 v16, v[28:31] offset:{192*128}", "sp")
    a(f"""
    s_lshl_b32 s{s_t0}, s{s_x}, 2
    s_add_u32 s{s_t0}, s{s_t0}, s{s_lead}
    v_mov_b32 v20, 1
    v_cmp_eq_u32 vcc, 0, v{v_lane}
    v_mov_b32 v21, {OOB}
    v_mov_b32 v23, -1
    v_cndmask_b32 v17, v21, 0, vcc
    """)
    a(f"buffer_store_dword v20, v17, s[{SDB}:{SDB+3}], s{s_t0} offen sc1", "sigA")

def clears(a):
    L = []
    def f0(a):
        a(f"""
        s_lshl_b32 s{s_t2}, s{s_w}, 15
        s_add_u32 s{s_t2}, s{s_t2}, s{s_ob}
        """)
        a(f"buffer_store_dwordx4 v[20:23], v{v_l16}, s[{SWS}:{SWS+3}], s{s_t2} offen sc1", "clr2")
    def f1(a):
        a(f"s_add_u32 s{s_t2}, s{s_t2}, 16384")
        a(f"buffer_store_dwordx4 v[20:23], v{v_l16}, s[{SWS}:{SWS+3}], s{s_t2} offen sc1", "clr2")
    def f2(a):
        a(f"buffer_store_dwordx4 v[20:23], v31, s[{SWS}:{SWS+3}], 0 offen sc1", "clr2")
    return [f0, f1, f2]

def y_addr(a):
    a(f"""
    v_mov_b32 v20, -1
    v_mov_b32 v21, -1
    v_mov_b32 v22, -1
    s_mul_i32 s{s_t0}, s{s_x}, 28
    s_add_u32 s{s_t0}, s{s_t0}, s{s_j}
    s_lshl_b32 s{s_t0}, s{s_t0}, 8
    s_mul_i32 s{s_t1}, s{s_w}, {2*224*256}
    s_add_u32 s{s_t0}, s{s_t0}, s{s_t1}
    s_add_u32 s{s_t0}, s{s_t0}, {WS_Y}
    s_cmp_lt_u32 s{s_j}, 28
    s_cselect_b32 s{s_t0}, s{s_t0}, {OOB}
    v_and_b32 v24, 1, v{v_lane}
    v_mul_u32_u24 v24, {8*224*256}, v24
    v_bfe_u32 v25, v{v_lane}, 1, 1
    v_mul_u32_u24 v25, {224*256}, v25
    v_bfe_u32 v26, v{v_lane}, 2, 2
    v_lshl_add_u32 v24, v26, 6, v24
    v_and_b32 v26, 48, v{v_lane}
    v_add3_u32 v24, v24, v25, v26
    v_add_u32 v31, s{s_t0}, v24
    """)

def p1_main(a, cfg, typ):
    SX1, SX2 = 60, 61
    for i in range(7):
        a.c(f"chunk {i}")
        a.wait(vm=f"c{i}", lg="sp")
        a("s_barrier")
        def rd(s_):
            L = [(f"ds_read_b128 v[{XF+16*i+4*s_}:{XF+16*i+4*s_+3}], v{10+s_} offset:{(i%4)*4096}", f"r{i}_{s_}")]
            for T in (0, 1):
                for e in (0, 1):
                    r = WF + 8*s_ + 4*T + 2*e
                    L.append((f"ds_read_b64_tr_b16 a[{r}:{r+1}], v{14+T} offset:{(64*i+16*s_+4*e)*128}", f"r{i}_{s_}"))
            return L
        run_all(a, rd(0)); run_all(a, rd(1))
        extra = []
        if i + cfg.D < 7: extra = dma_chunk(i + cfg.D)
        if i == 1: extra += clears(a)
        if i + cfg.D == 7:
            def pre(a):
                a(f"buffer_load_dword v254, v30, s[{SWS}:{SWS+3}], s{s_kv0} offen", "pre")
            def sig(a):
                a(f"s_lshl_b32 s{s_t0}, s{s_x}, 2")
                a(f"buffer_load_dword v29, off, s[{SDB}:{SDB+3}], s{s_t0} sc1", "sigld")
            extra += [pre, sig]
        if i + cfg.D >= 7:
            k = i + cfg.D - 7
            nq = cfg.nq_pre
            per = -(-nq // cfg.D)
            extra += [dma_wq(q) for q in range(k*per, min(nq, (k+1)*per))]
        for s_ in range(4):
            sh = rd(s_ + 2) if s_ < 2 else []
            if s_ >= 2:
                n = (len(extra) + 1) // 2 if s_ == 2 else len(extra)
                sh = extra[:n]; extra = extra[n:]
            a.wait(lg=f"r{i}_{s_}")
            x = XF + 16*i + 4*s_
            first = (i == 0 and s_ == 0)
            mf = []
            for T, A, C in ((0, ACC0, CS0), (1, ACC1, CS1)):
                w = WF + 8*s_ + 4*T
                c0 = "0" if first else f"v[{A}:{A+15}]"
                c1 = "0" if first else f"v[{C}:{C+3}]"
                if typ == 0: mf.append(f"v_mfma_f32_32x32x16_bf16 v[{A}:{A+15}], a[{w}:{w+3}], v[{x}:{x+3}], {c0}")
                else:        mf.append(f"v_mfma_f32_32x32x16_bf16 v[{A}:{A+15}], v[{x}:{x+3}], a[{w}:{w+3}], {c0}")
                mf.append(f"v_mfma_f32_16x16x32_bf16 v[{C}:{C+3}], v[{SEL}:{SEL+3}], a[{w}:{w+3}], {c1}")
            fill = []
            for k in range(4):
                fill.append(f"v_dot2c_f32_bf16 v{SX2+2*(k&1)}, v{x+k}, v{x+k}")
                fill.append(f"v_dot2c_f32_bf16 v{SX1+2*(k&1)}, s{s_ones}, v{x+k}")
            interleave(a, mf, sh, fill, [4, 1, 3, 0])
            run_all(a, sh)
    a.c("LN statistics")
    a(f"""
    v_add_f32 v60, v60, v62
    v_add_f32 v61, v61, v63
    v_and_b32 v24, s{s_hi16}, v{CS0}
    v_and_b32 v25, s{s_hi16}, v{CS1}
    v_permlane32_swap_b32 v60, v61
    v_add_f32 v60, v60, v61
    v_sub_f32 v26, v{CS0}, v24
    v_mul_f32 v60, {hex(f2u(1.0/448))}, v60
    v_sub_f32 v27, v{CS1}, v25
    v_mov_b32 v61, v60
    v_and_b32 v62, s{s_hi16}, v26
    v_and_b32 v63, s{s_hi16}, v27
    v_permlane32_swap_b32 v60, v61           ; v60 = mean, v61 = E[x^2]
    v_fma_f32 v61, -v60, v60, v61
    v_cvt_pk_bf16_f32 v60, v60, v60          ; (m, m)
    v_max_f32 v61, 0, v61
    v_sub_f32 v26, v26, v62
    v_cvt_pk_bf16_f32 v61, v61, v61
    v_sub_f32 v27, v27, v63
    v_and_b32 v61, s{s_hi16}, v61
    v_add_f32 v61, {hex(f2u(1e-5))}, v61
    v_lshrrev_b32 v24, 16, v24
    v_cvt_pk_bf16_f32 v61, v61, v61
    v_lshrrev_b32 v25, 16, v25
    v_and_b32 v61, s{s_hi16}, v61
    v_sqrt_f32 v61, v61
    v_or_b32 v{WOP0}, v24, v62
    v_or_b32 v{WOP1}, v25, v63
    v_cvt_pk_bf16_f32 v61, v61, v61
    v_xor_b32 v24, 0x80008000, v60
    v_and_b32 v62, s{s_hi16}, v61
    v_bfi_b32 v25, s{s_hi16}, v61, v24
    v_rcp_f32 v62, v62                       ; rstd
    v_cndmask_b32 v{XOP}, 0, v24, s[{s_lo}:{s_lo+1}]
    v_cndmask_b32 v{XOP+1}, 0, v25, s[{s_lo}:{s_lo+1}]
    v_bfi_b32 v28, s{s_hi16}, v61, v60
    """)
    if typ == 0:
        a(f"""
        v_lshrrev_b32 v{WOP0+1}, 16, v26
        v_lshrrev_b32 v{WOP1+1}, 16, v27
        s_nop 0
        v_mfma_f32_32x32x16_bf16 v[{ACC0}:{ACC0+15}], v[{WOP0}:{WOP0+3}], v[{XOP}:{XOP+3}], v[{ACC0}:{ACC0+15}]
        v_mfma_f32_32x32x16_bf16 v[{ACC1}:{ACC1+15}], v[{WOP1}:{WOP1+3}], v[{XOP}:{XOP+3}], v[{ACC1}:{ACC1+15}]
        """)
    else:
        a(f"""
        v_and_b32 v24, 31, v{v_lane}
        v_cmp_eq_u32 vcc, 28, v24
        v_mov_b32 v25, 0x3f80
        v_and_b32 v60, s{s_hi16}, v62
        v_cndmask_b32 v25, 0, v25, vcc
        v_sub_f32 v61, v62, v60
        v_alignbit_b32 v{WOP0+1}, v25, v26, 16
        v_alignbit_b32 v{WOP1+1}, v25, v27, 16
        v_and_b32 v63, s{s_hi16}, v61
        v_lshrrev_b32 v60, 16, v60
        v_mfma_f32_32x32x16_bf16 v[{ACC0}:{ACC0+15}], v[{XOP}:{XOP+3}], v[{WOP0}:{WOP0+3}], v[{ACC0}:{ACC0+15}]
        v_sub_f32 v61, v61, v63
        v_or_b32 v60, v60, v63
        v_lshrrev_b32 v61, 16, v61
        v_mov_b32 v26, 0
        v_mov_b32 v27, 0
        v_cndmask_b32 v24, 0, v60, s[{s_lo}:{s_lo+1}]
        v_cndmask_b32 v25, 0, v61, s[{s_lo}:{s_lo+1}]
        v_mov_b32 v{WOP0}, s{s_ones}
        v_mov_b32 v{WOP0+1}, s{s_ones}
        s_nop 0
        v_mfma_f32_32x32x16_bf16 v[{RSB}:{RSB+15}], v[24:27], v[{WOP0}:{WOP0+3}], 0
        v_mfma_f32_32x32x16_bf16 v[{ACC1}:{ACC1+15}], v[{XOP}:{XOP+3}], v[{WOP1}:{WOP1+3}], v[{ACC1}:{ACC1+15}]
        """)
    a.wait(vm="sigld")
    a(f"""
    v_readfirstlane_b32 s{s_t0}, v29
    s_cmp_lg_u32 s{s_t0}, 0
    s_cbranch_scc0 L_sigA_{typ}
L_sigA_ok_{typ}:
    """)
    for T, A in ((0, ACC0), (1, ACC1)):
        for k in range(8):
            if typ == 0: a(f"v_pk_mul_f32 v[{A+2*k}:{A+2*k+1}], v[{A+2*k}:{A+2*k+1}], v[62:63] op_sel_hi:[1,0]")
            else:        a(f"v_pk_mul_f32 v[{A+2*k}:{A+2*k+1}], v[{A+2*k}:{A+2*k+1}], v[{RSB+2*k}:{RSB+2*k+1}]")
            a(f"v_cvt_pk_bf16_f32 v{PK+8*T+k}, v{A+2*k}, v{A+2*k+1}")
            if typ == 0 and T == 0 and k == 6:
                a(f"v_cndmask_b32 v{PK+6}, 0, v{PK+6}, s[{s_lo}:{s_lo+1}]")
            if k in (3, 7):
                f = k // 4
                a(f"buffer_store_dwordx4 v[{PK+8*T+4*f}:{PK+8*T+4*f+3}], v{v_l16}, s[{SWS}:{SWS+3}], s{s_kv0+T} offen offset:{1024*f}", "kvst")

def spin_sigA(a, cfg, typ):
    a(f"""
L_sigA_{typ}:
    s_mov_b32 s{s_cnt}, 0
    s_lshl_b32 s{s_t1}, s{s_x}, 2
L_sigA_l{typ}:
    buffer_load_dword v29, off, s[{SDB}:{SDB+3}], s{s_t1} sc1
    s_add_u32 s{s_cnt}, s{s_cnt}, 1
    s_waitcnt vmcnt(0)
    v_readfirstlane_b32 s{s_t0}, v29
    s_cmp_gt_u32 s{s_cnt}, {cfg.spin}
    s_cbranch_scc1 L_sigA_ok_{typ}
    s_cmp_lg_u32 s{s_t0}, 0
    s_cbranch_scc0 L_sigA_l{typ}
    s_branch L_sigA_ok_{typ}
    """)


v_out = 15
v_y = 31
FA = 176; FB = 192; FD = 208; FD2 = 212; ONES = 216
OF = 176
s_pad = 18
LOG2E = 1.4426950408889634
QSCALE = 28 ** -0.5 * LOG2E
L_LO = (127 - 40) << 23
L_RNG = 80 << 23

def dpp_max(t, full=True):
    L = [f"v_max_u32_dpp v{t}, v{t}, v{t} quad_perm:[1,0,3,2] row_mask:0xf bank_mask:0xf",
         f"v_max_u32_dpp v{t}, v{t}, v{t} quad_perm:[2,3,0,1] row_mask:0xf bank_mask:0xf",
         f"v_max_u32_dpp v{t}, v{t}, v{t} row_half_mirror row_mask:0xf bank_mask:0xf",
         f"v_max_u32_dpp v{t}, v{t}, v{t} row_mirror row_mask:0xf bank_mask:0xf",
         f"v_max_u32_dpp v{t}, v{t}, v{t} row_bcast:15 row_mask:0xa bank_mask:0xf"]
    if full: L.append(f"v_max_u32_dpp v{t}, v{t}, v{t} row_bcast:31 row_mask:0xc bank_mask:0xf")
    return L

def lines(s): return [x.strip() for x in s.strip().split("\n") if x.strip() and not x.strip().startswith(";")]

def q_phase(a, cfg):
    a.c("stats publish, remaining W_q, Q GEMM")
    a(f"""
    s_lshl_b32 s{s_t2}, s{s_tb}, 2
    s_add_u32 s{s_t2}, s{s_t2}, s{s_w}            ; kt
    s_lshl_b32 s{s_t0}, s{s_x}, 13
    s_lshl_b32 s{s_t1}, s{s_t2}, 7
    s_add_u32 s{s_t0}, s{s_t0}, s{s_t1}
    s_add_u32 s{s_t0}, s{s_t0}, {ST_OFF}
    s_cmp_eq_u32 s{s_p}, 0
    s_cselect_b32 s{s_qt}, s{s_t0}, {OOB}
    v_and_b32 v24, 31, v{v_lane}
    v_lshlrev_b32 v27, 2, v24
    """)
    a(f"buffer_store_dword v28, v27, s[{SWS}:{SWS+3}], s{s_qt} offen", "kvst")
    for q in range(cfg.nq_pre, 7): dma_wq(q)(a)
    a(f"""
    s_lshl_b32 s{s_t0}, s{s_w}, 7
    s_add_u32 s{s_t0}, s{s_t0}, {L_ST}
    v_add_u32 v25, s{s_t0}, v27
    """)
    a(f"ds_write_b32 v25, v28", "stw")
    fill = lines(f"""
    v_ashrrev_i32 v25, 31, v{ACC0+12}
    s_lshl_b32 s{s_t0}, s{s_t2}, 5
    v_or_b32 v25, 0x80000000, v25
    s_sub_u32 s{s_t0}, 2047, s{s_t0}
    v_xor_b32 v25, v25, v{ACC0+12}
    v_sub_u32 v24, s{s_t0}, v24
    v_and_b32 v25, 0xfffff800, v25
    v_or_b32 v25, v25, v24
    v_max_u32 v25, 1, v25
    v_cndmask_b32 v25, v25, 0, s[{s_lo}:{s_lo+1}]
    v_mov_b32 v26, v25
    """) + dpp_max(26, False) + lines(f"""
    v_readlane_b32 s{s_k1}, v26, 63
    v_mov_b32 v30, s{s_xcc}
    v_cmp_eq_u32 vcc, s{s_k1}, v25
    v_writelane_b32 v30, s{s_k1}, 1
    v_cndmask_b32 v26, v25, 0, vcc
    """) + dpp_max(26, False) + lines(f"""
    v_readlane_b32 s{s_k2}, v26, 63
    s_mul_i32 s{s_t0}, s{s_p}, 12
    s_lshl_b32 s{s_t1}, s{s_p}, 1
    s_sub_u32 s{s_t1}, 3, s{s_t1}
    v_lshl_add_u32 v29, v{v_lane}, 2, s{s_t0}
    v_cmp_gt_u32 vcc, s{s_t1}, v{v_lane}
    v_mov_b32 v24, {OOB}
    v_writelane_b32 v30, s{s_k2}, 2
    v_cndmask_b32 v29, v24, v29, vcc
    s_lshl_b32 s{s_t2}, s{s_t2}, 4
    s_add_u32 s{s_chk}, s{s_t2}, s{s_fo}          ; flag record offset (kept for the slow path)
    """)
    nkey = len(fill)
    fill2 = lines(f"""
    v_mul_u32_u24 v3, 3584, v{v_lane}
    v_lshrrev_b32 v24, 4, v{v_lane}
    v_and_b32 v25, 15, v{v_lane}
    v_mul_u32_u24 v4, 896, v24
    v_lshl_add_u32 v4, v25, 4, v4
    v_bfe_u32 v26, v{v_lane}, 2, 2
    v_lshl_add_u32 v5, v24, 3, v26
    v_lshlrev_b32 v5, 4, v5
    v_and_b32 v6, 1, v{v_lane}
    v_lshl_add_u32 v5, v6, 3, v5
    v_bfe_u32 v6, v{v_lane}, 1, 1
    v_mul_u32_u24 v6, {L_U - L_G}, v6
    v_add3_u32 v5, v5, v6, s{s_lw}
    v_and_b32 v6, 3, v{v_lane}
    v_lshlrev_b32 v6, 3, v6
    v_lshl_add_u32 v6, v24, 5, v6
    v_lshl_add_u32 v6, v26, 8, v6
    v_add_u32 v6, s{s_lw}, v6
    v_and_b32 v7, 1, v24
    v_lshlrev_b32 v7, 2, v7
    v_and_b32 v8, 7, v{v_lane}
    v_xor_b32 v8, v7, v8
    v_lshrrev_b32 v7, 3, v{v_lane}
    v_mul_u32_u24 v7, 896, v7
    v_cmp_eq_u32 vcc, 7, v8
    v_lshl_add_u32 v7, v8, 4, v7
    v_mov_b32 v8, {OOB}
    v_cndmask_b32 v7, v7, v8, vcc
    s_lshl_b32 s{s_t0}, s{s_w}, 5
    v_lshl_add_u32 v{v_out}, v24, 3, s{s_t0}
    v_cmp_gt_u32 vcc, 112, v{v_out}
    v_mad_u32_u24 v{v_out}, v25, s{s_t3}, v{v_out}
    v_add_u32 v10, s{s_lw}, v{v_l16}
    v_cndmask_b32 v{v_out}, v8, v{v_out}, vcc
    v_lshrrev_b32 v11, 2, v25
    v_cmp_eq_u32 vcc, v11, v24
    v_and_b32 v11, 3, v{v_lane}
    v_lshlrev_b32 v11, 4, v11
    v_cndmask_b32 v12, 64, v11, vcc
    v_min_u32 v11, 32, v12
    v_xor_b32 v12, 32, v12
    v_min_u32 v12, 32, v12
    v_add_u32 v11, s{s_lw}, v11
    v_add_u32 v12, s{s_lw}, v12
    v_and_b32 v13, 1, v{v_lane}
    v_lshlrev_b32 v13, 4, v13
    v_and_b32 v24, 14, v{v_lane}
    v_add3_u32 v14, v13, v24, s{s_lw}
    v_and_b32 v24, 6, v{v_lane}
    v_lshl_add_u32 v13, v24, 1, v13
    v_and_b32 v24, 8, v{v_lane}
    v_lshl_add_u32 v13, v24, 5, v13
    v_add_u32 v13, {L_FP}, v13
    """)
    a(f"s_movk_i32 s{s_t3}, 896")
    fill += fill2
    a.wait(vm=f"q{cfg.nq_pre-1}", lg="stw")
    a("s_barrier")
    def rd(k):
        i, s_ = divmod(k, 4)
        L = []
        for e in (0, 1):
            r = WF + 4*(k % 8) + 2*e
            L.append((f"ds_read_b64_tr_b16 a[{r}:{r+1}], v{18 + s_//2} offset:{(s_%2)*WVSZ + i*1024 + e*256}", f"rq{k}"))
        return L
    n1 = 4 * cfg.nq_pre
    run_all(a, rd(0)); run_all(a, rd(1))
    done_flag = False
    for k in range(28):
        if k == n1 and n1 < 28:
            a.wait(vm="q6"); a("s_barrier")
            run_all(a, rd(k)); run_all(a, rd(k+1))
        sh = rd(k + 2) if (k + 2 < 28 and not (k < n1 <= k + 2)) else []
        a.wait(lg=f"rq{k}")
        w = WF + 4*(k % 8); x = XF + 4*k
        c0 = "0" if k == 0 else f"v[{ACCQ}:{ACCQ+15}]"
        c1 = "0" if k == 0 else f"v[{CSQ}:{CSQ+3}]"
        mf = [f"v_mfma_f32_32x32x16_bf16 v[{ACCQ}:{ACCQ+15}], a[{w}:{w+3}], v[{x}:{x+3}], {c0}",
              f"v_mfma_f32_16x16x32_bf16 v[{CSQ}:{CSQ+3}], v[{SEL}:{SEL+3}], a[{w}:{w+3}], {c1}"]
        interleave(a, mf, sh, fill, [4, 1])
        if k == cfg.flag_at:
            while len(fill) > len(fill2): a(fill.pop(0))
            a.wait(vm="kvst")
            a(f"buffer_store_dword v30, v29, s[{SWS}:{SWS+3}], s{s_chk} offen", "flag")
            stamp(a, cfg, 3)
        if k == cfg.poll_at:
            a(f"buffer_load_dwordx4 v[{ACC1}:{ACC1+3}], v{v_l16}, s[{SWS}:{SWS+3}], s{s_fo} offen sc1", "poll")
    while fill: a(fill.pop(0))
    stamp(a, cfg, 4)

def poll_check(a, cfg):
    a(f"s_mov_b32 s{s_cnt}, 0")
    a(f"s_mov_b32 s{s_reg}, {WS_KVA}")
    a.wait(vm="poll")
    x = s_xcc
    a.label("L_fchk")
    if cfg.force_slow_kv:
        a("s_branch L_fretry")
    a(f"""
    v_min_u32 v24, v{ACC1+1}, v{ACC1+2}
    v_cmp_ne_u32 vcc, s{x}, v{ACC1}
    v_cmp_ne_u32 s[{s_sv}:{s_sv+1}], s{x}, v{ACC1+3}
    s_or_b64 vcc, vcc, s[{s_sv}:{s_sv+1}]
    v_cmp_eq_u32 s[{s_sv}:{s_sv+1}], 0, v24
    s_or_b64 vcc, vcc, s[{s_sv}:{s_sv+1}]
    s_cbranch_scc1 L_fretry
L_fok:
    """)

def poll_slow(a, cfg):
    a(f"""
L_fretry:
    s_add_u32 s{s_cnt}, s{s_cnt}, 1
    s_cmp_lt_u32 s{s_cnt}, {cfg.fto}
    s_cbranch_scc1 L_fagain
    s_cmp_gt_u32 s{s_cnt}, {cfg.spin}
    s_cbranch_scc1 L_fok
    s_cmp_eq_u32 s{s_cnt}, {cfg.fto}
    s_cbranch_scc0 L_gpoll
    s_add_u32 s{s_t0}, s{s_kv0}, {WS_KVB}
    s_add_u32 s{s_t1}, s{s_kv1}, {WS_KVB}
    s_add_u32 s{s_t2}, s{s_qt}, {WS_KVB}
    buffer_store_dwordx4 v[{PK}:{PK+3}], v{v_l16}, s[{SWS}:{SWS+3}], s{s_t0} offen sc1
    buffer_store_dwordx4 v[{PK+4}:{PK+7}], v{v_l16}, s[{SWS}:{SWS+3}], s{s_t0} offen offset:1024 sc1
    buffer_store_dwordx4 v[{PK+8}:{PK+11}], v{v_l16}, s[{SWS}:{SWS+3}], s{s_t1} offen sc1
    buffer_store_dwordx4 v[{PK+12}:{PK+15}], v{v_l16}, s[{SWS}:{SWS+3}], s{s_t1} offen offset:1024 sc1
    buffer_store_dword v28, v27, s[{SWS}:{SWS+3}], s{s_t2} offen sc1
    s_waitcnt vmcnt(0)
    buffer_store_dword v30, v29, s[{SWS}:{SWS+3}], s{s_chk} offen offset:1024 sc1
L_gpoll:
    buffer_load_dwordx4 v[{ACC1}:{ACC1+3}], v{v_l16}, s[{SWS}:{SWS+3}], s{s_fo} offen offset:1024 sc1
    s_waitcnt vmcnt(0)
    v_min3_u32 v24, v{ACC1}, v{ACC1+1}, v{ACC1+2}
    v_min_u32 v24, v24, v{ACC1+3}
    v_cmp_eq_u32 vcc, 0, v24
    s_cbranch_vccnz L_fagain
    s_mov_b32 s{s_reg}, {WS_KVB}
    s_branch L_fok
L_fagain:
    buffer_load_dwordx4 v[{ACC1}:{ACC1+3}], v{v_l16}, s[{SWS}:{SWS+3}], s{s_fo} offen sc1
    s_waitcnt vmcnt(0)
    s_branch L_fchk
    """)

def kv_load(kt, f):
    return (f"buffer_load_dwordx4 a[{16*kt+4*f}:{16*kt+4*f+3}], v{v_l16}, s[{SWS}:{SWS+3}], s{s_kvc} offen offset:{1024*f} sc1",
            f"k{kt}" if f < 2 else f"v{kt}")

def q_epilogue(a, cfg):
    stamp(a, cfg, 5)
    a(f"""
    s_lshl_b32 s{s_t0}, s{s_h}, 18
    s_lshl_b32 s{s_t1}, s{s_w}, 16
    s_add_u32 s{s_t0}, s{s_t0}, s{s_t1}
    s_add_u32 s{s_kvc}, s{s_t0}, s{s_reg}
    """)
    for kt in range(cfg.kv_pre):
        for f in range(4): a(*kv_load(kt, f))
        a(f"s_add_u32 s{s_kvc}, s{s_kvc}, 4096")
    a(f"""
    v_and_b32 v24, s{s_hi16}, v{CSQ}
    v_sub_f32 v26, v{CSQ}, v24
    v_lshrrev_b32 v24, 16, v24
    v_and_b32 v25, s{s_hi16}, v26
    v_sub_f32 v26, v26, v25
    v_or_b32 v{WOP1}, v24, v25
    v_lshrrev_b32 v{WOP1+1}, 16, v26
    v_mul_f32 v62, {hex(f2u(QSCALE))}, v62
    v_mov_b32 v26, v{ACC1+1}
    v_mfma_f32_32x32x16_bf16 v[{ACCQ}:{ACCQ+15}], v[{WOP1}:{WOP1+3}], v[{XOP}:{XOP+3}], v[{ACCQ}:{ACCQ+15}]
    """)
    for l in dpp_max(26): a(l)
    a(f"""
    v_readlane_b32 s{s_k1}, v26, 63
    s_add_u32 s{s_t0}, s{s_x}, 32
    s_lshl_b32 s{s_t0}, s{s_t0}, 2
    v_cmp_eq_u32 vcc, s{s_k1}, v{ACC1+1}
    s_add_u32 s{s_t0}, s{s_t0}, s{s_lead}
    v_mov_b32 v20, 0
    v_cndmask_b32 v26, v{ACC1+1}, v{ACC1+2}, vcc
    """)
    a(f"buffer_store_dword v30, v17, s[{SDB}:{SDB+3}], s{s_t0} offen sc1", "sigB")
    d = dpp_max(26)
    for k in range(8):
        a(f"v_pk_mul_f32 v[{ACCQ+2*k}:{ACCQ+2*k+1}], v[{ACCQ+2*k}:{ACCQ+2*k+1}], v[62:63] op_sel_hi:[1,0]")
        a(f"v_cvt_pk_bf16_f32 v{PK+k}, v{ACCQ+2*k}, v{ACCQ+2*k+1}")
        if k >= 6: a(f"v_cndmask_b32 v{PK+k}, 0, v{PK+k}, s[{s_lo}:{s_lo+1}]")
        if d: a(d.pop(0))
        if k in (3, 7):
            a(f"ds_write_b128 v10, v[{PK+k-3}:{PK+k}] offset:{L_QX + (k//4)*1024}", "qw")
    a(f"""
    v_readlane_b32 s{s_k2}, v26, 63
    v_mov_b32 v21, 0
    v_mov_b32 v22, 0
    v_mov_b32 v23, 0
    v_mov_b32 v24, s{s_lw}
    s_andn2_b32 s{s_ia}, 2047, s{s_k1}
    s_andn2_b32 s{s_ib}, 2047, s{s_k2}
    """)
    a(f"ds_write_b128 v24, v[20:23] offset:{L_H + 32}", "qw")
    a(f"""
    v_mov_b32 v24, s{s_ia}
    v_mov_b32 v25, s{s_ib}
    s_mov_b32 vcc_lo, 0xaaaaaaaa
    s_mov_b32 vcc_hi, 0xaaaaaaaa
    v_add_u32 v18, {L_WV}, v{v_l16}
    v_add_u32 v19, {L_WV + 2*WVSZ}, v{v_l16}
    v_cndmask_b32 v24, v24, v25, vcc
    v_and_b32 v25, 48, v{v_lane}
    v_mad_u32_u24 v25, v24, s{s_t3}, v25
    v_lshlrev_b32 v24, 2, v24
    s_lshl_b32 s{s_t0}, s{s_w}, 8
    s_lshl_b32 s{s_t1}, s{s_x}, 13
    s_add_u32 s{s_t1}, s{s_t1}, s{s_reg}
    s_add_u32 s{s_t1}, s{s_t1}, {ST_OFF}
    """)
    a.wait(lg="qw")
    a("s_barrier")
    for qt in range(4):
        for f in range(2):
            a(f"ds_read_b128 v[{QF+8*qt+4*f}:{QF+8*qt+4*f+3}], v{18 + qt//2} offset:{(qt%2)*WVSZ + L_QX + f*1024}", f"qf{qt}")
    for k in range(4):
        a(f"buffer_load_dwordx4 v[{FB+4*k}:{FB+4*k+3}], v25, s[{SX}:{SX+3}], s{s_t0} offen offset:{64*k}", "fb")
    a(f"buffer_load_dword v9, v24, s[{SWS}:{SWS+3}], s{s_t1} offen sc1", "fb")
    a(f"""
    v_add_u32 v27, 6144, v7
    v_add_u32 v28, 12288, v7
    v_add_u32 v29, 18432, v7
    v_mov_b32 v{ONES}, s{s_ones}
    v_mov_b32 v{ONES+1}, s{s_ones}
    v_mov_b32 v{ONES+2}, s{s_ones}
    v_mov_b32 v{ONES+3}, s{s_ones}
    s_cmp_eq_u32 s{s_w}, 3
    s_cselect_b32 s{s_pad+1}, 0, -1
    s_mov_b32 s{s_pad}, -1
    s_mov_b32 s{s_fail}, 0
    s_lshl_b32 s{s_t0}, s{s_tb}, 3
    s_add_u32 s{s_t0}, s{s_t0}, s{s_p}
    s_mul_i32 s{s_t0}, s{s_t0}, {16*896}
    s_mul_i32 s{s_t1}, s{s_x}, 112
    s_add_u32 s{s_outb}, s{s_t0}, s{s_t1}
    s_min_u32 s{s_j}, s{s_j}, 27
    s_mul_i32 s{s_t0}, s{s_x}, 28
    s_add_u32 s{s_j}, s{s_j}, s{s_t0}
    """)


def tile_of(t):
    return (t // 3, t % 3) if t < 48 else (t - 48, 3)

def qk(t):
    kt, qt = tile_of(t); S = S_[t % 2]; k = 16*kt; q = QF + 8*qt
    return [f"v_mfma_f32_32x32x16_bf16 v[{S}:{S+15}], a[{k}:{k+3}], v[{q}:{q+3}], 0",
            f"v_mfma_f32_32x32x16_bf16 v[{S}:{S+15}], a[{k+4}:{k+7}], v[{q+4}:{q+7}], v[{S}:{S+15}]"]
def pv(t):
    kt, qt = tile_of(t); P = P_[t % 2]; k = 16*kt + 8; o = OA + 16*qt
    c = "0" if kt == 0 else f"v[{o}:{o+15}]"
    return [f"v_mfma_f32_32x32x16_bf16 v[{o}:{o+15}], a[{k}:{k+3}], v[{P}:{P+3}], {c}",
            f"v_mfma_f32_32x32x16_bf16 v[{o}:{o+15}], a[{k+4}:{k+7}], v[{P+4}:{P+7}], v[{o}:{o+15}]"]

def W(vm=(), lg=()):
    return lambda a: a.wait(vm=vm, lg=lg)
def T(text, tag=None):
    return lambda a: a(text, tag)

def o_write(src, off, lt, tag):
    L = [T(f"ds_write_b128 v10, v[{src+4*g}:{src+4*g+3}] offset:{off + 1024*g}", tag) for g in range(4)]
    L.append(T(f"ds_write_b32 v8, v{src+12} offset:{512*lt}", tag))
    return L
def o_read(dst, dl, off, lt, tag):
    L = [T(f"ds_read_b128 v[{dl}:{dl+3}], v14 offset:{512*lt}", tag)]
    L += [T(f"ds_read_b128 v[{dst+4*w}:{dst+4*w+3}], v{12 + w//2} offset:{(w%2)*WVSZ + off}", tag) for w in range(4)]
    return L
def o_norm(dst, dl, out, chk=True):
    return lines(f"""
    v_pk_add_f32 v[{dl}:{dl+1}], v[{dl}:{dl+1}], v[{dl+2}:{dl+3}]
    v_pk_add_f32 v[{dst}:{dst+1}], v[{dst}:{dst+1}], v[{dst+4}:{dst+5}]
    v_add_f32 v{dl}, v{dl}, v{dl+1}
    v_pk_add_f32 v[{dst+2}:{dst+3}], v[{dst+2}:{dst+3}], v[{dst+6}:{dst+7}]
    v_rcp_f32 v{dl+2}, v{dl}
    v_pk_add_f32 v[{dst+8}:{dst+9}], v[{dst+8}:{dst+9}], v[{dst+12}:{dst+13}]
    v_subrev_u32 v{dl}, {hex(L_LO)}, v{dl}
    v_pk_add_f32 v[{dst+10}:{dst+11}], v[{dst+10}:{dst+11}], v[{dst+14}:{dst+15}]
    v_cndmask_b32 v{dl+2}, 0, v{dl+2}, s[{s_pad}:{s_pad+1}]
    v_pk_add_f32 v[{dst}:{dst+1}], v[{dst}:{dst+1}], v[{dst+8}:{dst+9}]
    v_pk_add_f32 v[{dst+2}:{dst+3}], v[{dst+2}:{dst+3}], v[{dst+10}:{dst+11}]
    v_cmp_le_u32 vcc, {hex(L_RNG)}, v{dl}
    v_pk_mul_f32 v[{dst}:{dst+1}], v[{dst}:{dst+1}], v[{dl+2}:{dl+3}] op_sel_hi:[1,0]
    v_pk_mul_f32 v[{dst+2}:{dst+3}], v[{dst+2}:{dst+3}], v[{dl+2}:{dl+3}] op_sel_hi:[1,0]
    v_cvt_pk_bf16_f32 v{out}, v{dst}, v{dst+1}
    v_cvt_pk_bf16_f32 v{out+1}, v{dst+2}, v{dst+3}
    v_min_u32 v{out}, -2, v{out}
    v_min_u32 v{out+1}, -2, v{out+1}
    """)

def attention(a, cfg):
    NS = 64
    sh = [[] for _ in range(NS * 4)]
    xm = [[] for _ in range(NS * 4)]
    xv = [[] for _ in range(NS * 4)]
    def put(g, items):
        for it in items:
            while sh[g]: g += 1
            sh[g].append(it); g += 1
        return g
    def putv(g, items, per):
        for i in range(0, len(items), per):
            xv[g] += items[i:i+per]; g += 1
        return g
    sh[1*4 + 1].append(W(vm="v0"))
    for kt in range(1, 16):
        sh[(3*kt - 2)*4 + 3].append(W(vm=(f"k{kt}", f"v{kt}")))
    sh[0].append(W(lg="qf2"))
    sh[2].append(W(lg="qf3"))
    nxt = cfg.kv_pre; step = 0
    while nxt < 16:
        g = step * 12
        for _ in range(cfg.kv_rate):
            if nxt < 16:
                g = put(g, [(lambda x: (lambda a: a(*x)))(kv_load(nxt, f)) for f in range(4)] + [T(f"s_add_u32 s{s_kvc}, s{s_kvc}, 4096")])
                nxt += 1
        step += 1
    g = cfg.gu_at * 12
    def gu(srd, l, e, first):
        def f(a):
            if first:
                a(f"s_mul_i32 s{s_t0}, s{s_w}, {128*3584}")
                a(f"s_lshl_b32 s{s_t1}, s{s_j}, 4")
                a(f"s_add_u32 s{s_t0}, s{s_t0}, s{s_t1}")
                a(f"s_add_u32 s{s_t1}, s{s_t0}, {64*3584}")
            a(f"s_add_u32 m0, s{s_lw}, {l + 1024*e}")
        return [f, T(f"buffer_load_dwordx4 v3, s[{srd}:{srd+3}], s{s_t0+e} offen lds", "gu")]
    k = 0
    for srd, l in ((SG, L_G), (SU, L_U)):
        for e in (0, 1):
            put(g + k * cfg.gu_gap, gu(srd, l, e, k == 0)); k += 1
    g = g + 4 * cfg.gu_gap
    def wd0(a):
        a(f"s_mul_i32 s{s_t0}, s{s_j}, {8*896}")
        a(f"s_mul_i32 s{s_t1}, s{s_w}, 224")
        a(f"s_add_u32 s{s_t0}, s{s_t0}, s{s_t1}")
        a(f"s_add_u32 s{s_t1}, s{s_t0}, {4*896 - 1024}")
        a(f"s_add_u32 m0, s{s_lw}, {L_WD}")
    g = put(g, [wd0, T(f"buffer_load_dwordx4 v4, s[{SWD}:{SWD+3}], s{s_t0} offen lds", "gu"),
                T(f"buffer_load_dwordx4 v4, s[{SWD}:{SWD+3}], s{s_t1} offen offset:1024 lds", "gu")])
    g = put(g, [T(f"s_add_u32 s{s_t0}, s{s_outb}, {32*896}"),
                T(f"buffer_load_dwordx2 v[{XV}:{XV+1}], v{v_out}, s[{SX}:{SX+3}], s{s_outb} offen", "xv"),
                T(f"buffer_load_dwordx2 v[{XV+2}:{XV+3}], v{v_out}, s[{SX}:{SX+3}], s{s_t0} offen", "xv"),
                T(f"s_add_u32 s{s_t0}, s{s_outb}, {64*896}"),
                T(f"buffer_load_dwordx2 v[{XV+4}:{XV+5}], v{v_out}, s[{SX}:{SX+3}], s{s_t0} offen", "xv"),
                T(f"s_add_u32 s{s_t0}, s{s_outb}, {96*896}"),
                T(f"buffer_load_dwordx2 v[{XV+6}:{XV+7}], v{v_out}, s[{SX}:{SX+3}], s{s_t0} offen", "xv")])
    gx = g
    gwo = max(g, cfg.wo_at * 12)
    def wo0(a):
        a(f"s_mul_i32 s{s_t2}, s{s_w}, {112*896}")
        a(f"s_mul_i32 s{s_t3}, s{s_x}, 112")
        a(f"s_add_u32 s{s_t2}, s{s_t2}, s{s_t3}")
        a(f"s_mul_i32 s{s_c}, s{s_w}, {112*128}")
    L = [wo0]
    for e in range(14):
        if e % 4 == 0:
            if e: L.append(T(f"s_add_u32 s{s_t2}, s{s_t2}, {32*896}"))
            L.append(T(f"s_add_u32 m0, s{s_c}, {1024*e}"))
        L.append(T(f"buffer_load_dwordx4 v{[7,27,28,29][e%4]}, s[{SWO}:{SWO+3}], s{s_t2} offen offset:{1024*(e%4)} lds", "wo"))
    wo_items = L
    g = cfg.ffn_at * 12
    assert g >= gx - 7, (g, gx)
    g = put(g, [W(vm=("gu", "fb"))])
    rdA = [T(f"ds_read_b64_tr_b16 v[{FA+4*k+2*e}:{FA+4*k+2*e+1}], v5 offset:{L_G + (32*k+4*e)*16}", "fa") for k in range(4) for e in (0, 1)]
    xv[g] += lines(f"""
    v_lshlrev_b32 v220, 16, v9
    v_and_b32 v222, s{s_hi16}, v9
    v_rcp_f32 v222, v222
    """)
    xv[g+1] += [f"s_lshl_b32 s{s_cnt}, s{s_w}, 10", f"s_add_u32 s{s_cnt}, s{s_cnt}, {L_FP}", f"v_add_u32 v221, s{s_cnt}, v{v_l16}"]
    g = put(g, rdA)
    g = put(g, [W(lg="fa")])
    rdD = [T(f"ds_read_b64_tr_b16 v[{224+4*m+2*e}:{224+4*m+2*e+1}], v6 offset:{L_WD + 1024*e + 112*m}", "fd") for m in (0, 1) for e in (0, 1)]
    for k in range(4):
        c0 = "0" if k == 0 else f"v[{FD}:{FD+3}]"; c1 = "0" if k == 0 else f"v[{FD2}:{FD2+3}]"
        xm[g] = [f"v_mfma_f32_16x16x32_bf16 v[{FD}:{FD+3}], v[{FA+4*k}:{FA+4*k+3}], v[{FB+4*k}:{FB+4*k+3}], {c0}", rdD[k]]; g += 1
        xm[g] = [f"v_mfma_f32_16x16x32_bf16 v[{FD2}:{FD2+3}], v[{FA+4*k}:{FA+4*k+3}], v[{ONES}:{ONES+3}], {c1}"]; g += 1
    g += 1
    xv[g] += [f"v_fma_f32 v{FD+k}, -v220, v{FD2+k}, v{FD+k}" for k in range(4)]
    g = put(g + 1, [T(f"ds_write_b128 v221, v[{FD}:{FD+3}]", "fp")])
    g = put(g + 1, [W(lg="fp"), T("s_barrier")])
    g = put(g, [T(f"ds_read2st64_b32 v[{FA+2*w}:{FA+2*w+1}], v13 offset0:{4*w} offset1:{4*w+2}", "fr") for w in range(4)])
    g = put(g + 1, [W(lg="fr")])
    act = lines(f"""
    v_pk_add_f32 v[{FA}:{FA+1}], v[{FA}:{FA+1}], v[{FA+2}:{FA+3}]
    v_pk_add_f32 v[{FA+4}:{FA+5}], v[{FA+4}:{FA+5}], v[{FA+6}:{FA+7}]
    v_pk_add_f32 v[{FA}:{FA+1}], v[{FA}:{FA+1}], v[{FA+4}:{FA+5}]
    v_pk_mul_f32 v[{FA}:{FA+1}], v[{FA}:{FA+1}], v[222:223] op_sel_hi:[1,0]
    v_mul_f32 v{FA+2}, {hex(f2u(-LOG2E))}, v{FA}
    v_exp_f32 v{FA+2}, v{FA+2}
    v_mul_f32 v{FA}, v{FA}, v{FA+1}
    v_add_f32 v{FA+2}, 1.0, v{FA+2}
    v_rcp_f32 v{FA+2}, v{FA+2}
    """)
    xv[g-1] += act
    xv[g] += [f"v_mul_f32 v{FA}, v{FA}, v{FA+2}", f"v_cvt_pk_bf16_f32 v{FA}, v{FA}, v{FA}"]
    g = put(g + 1, [T(f"ds_write_b16 v14, v{FA} offset:{L_H}", "fh"),
                    T(f"ds_read_b128 v[{FA+4}:{FA+7}], v11 offset:{L_H}", "fh"),
                    T(f"ds_read_b128 v[{FA+8}:{FA+11}], v12 offset:{L_H}", "fh")])
    g = put(g + 1, [W(lg=("fh", "fd"))])
    xm[g] = [f"v_mfma_f32_16x16x32_bf16 v[{FD}:{FD+3}], v[224:227], v[{FA+4}:{FA+7}], 0"]; g += 1
    xm[g] = [f"v_mfma_f32_16x16x32_bf16 v[{FD}:{FD+3}], v[228:231], v[{FA+8}:{FA+11}], v[{FD}:{FD+3}]"]; g += 2
    xv[g] += [f"v_min_u32 v{FD+k}, -2, v{FD+k}" for k in range(4)]
    g = put(g + 1, [T(f"buffer_store_dwordx4 v[{FD}:{FD+3}], v{v_y}, s[{SWS}:{SWS+3}], 0 offen sc1", "yst")])
    gf = g
    adr = lines(f"""
    v_and_b32 v14, 31, v{v_lane}
    s_lshl_b32 s{s_t0}, s{s_w}, 10
    v_lshlrev_b32 v14, 4, v14
    s_add_u32 s{s_t0}, s{s_t0}, {L_WV}
    v_and_b32 v11, 0xff, v14
    v_add_u32 v12, s{s_t0}, v{v_l16}
    v_add_u32 v13, {2*WVSZ}, v12
    v_and_b32 v9, 48, v{v_lane}
    v_lshl_add_u32 v11, v9, 10, v11
    v_add_u32 v14, {L_L}, v14
    v_mov_b32 v9, {OOB}
    s_lshl_b32 s{s_t0}, s{s_w}, 2
    v_cndmask_b32 v9, v9, v11, s[{s_lo}:{s_lo+1}]
    v_add_u32 v8, s{s_t0}, v14
    s_add_u32 s{s_t0}, s{s_lw}, 6144
    v_mov_b32 v3, s{s_t0}
    v_cndmask_b32 v8, v8, v3, s[{s_lo}:{s_lo+1}]
    s_lshl_b32 s{s_t0}, s{s_w}, 8
    s_add_u32 s{s_ob}, s{s_ob}, s{s_t0}
    v_lshlrev_b32 v3, 2, v{v_lane}
    """)
    g = putv(g, adr, 32)
    assert g <= 47*4 + 2, g
    g = put(47*4 + 2, o_write(OA, L_R, 0, "ow"))
    g = put(max(g, 48*4 + 2), o_write(OA + 16, L_R + 4096, 1, "ow"))
    g = put(max(g, 49*4 + 2), o_write(OA + 32, L_R + 8192, 2, "ow"))
    g = put(g, [T(f"buffer_load_dword v4, v3, s[{SDB}:{SDB+3}], 0 offen offset:128 sc1", "sigBl")])
    g = put(g, [W(lg="ow"), T("s_barrier")])
    PO = 252
    gr = []
    for qt in range(3):
        g = put(g, o_read(OA + 16*qt, 240 + 4*qt, L_R + 4096*qt, qt, f"or{qt}"))
        gr.append(g)
    for qt in range(3):
        g = gr[qt] + 1
        sh[g].append(W(lg=f"or{qt}"))
        out = PO + 2*qt if qt < 2 else OA + 4
        it = o_norm(OA + 16*qt, 240 + 4*qt, out)
        it += [f"s_cmp_lg_u64 vcc, 0", f"s_cselect_b32 s{s_t0}, {3 if qt < 2 else 4}, 0", f"s_or_b32 s{s_fail}, s{s_fail}, s{s_t0}"]
        if cfg.force_slow_sm: it += [f"s_or_b32 s{s_fail}, s{s_fail}, {cfg.force_slow_sm & 7}"]
        if qt == 1:
            it += [f"v_permlane32_swap_b32 v{PO}, v{PO+2}", f"v_permlane32_swap_b32 v{PO+1}, v{PO+3}",
                   f"s_and_b32 s{s_t0}, s{s_fail}, 3", f"s_cselect_b32 s{s_t0}, {OOB}, s{s_ob}"]
        if qt == 2:
            it += [f"v_permlane32_swap_b32 v{OA+4}, v{OA+6}", f"v_permlane32_swap_b32 v{OA+5}, v{OA+7}",
                   f"s_add_u32 s{s_t1}, s{s_ob}, 65536", f"s_and_b32 s{s_t0}, s{s_fail}, 4", f"s_cselect_b32 s{s_t0}, {OOB}, s{s_t1}"]
        xv[g] += it
        if qt == 1: sh[g+1].append(T(f"buffer_store_dwordx4 v[{PO}:{PO+3}], v11, s[{SWS}:{SWS+3}], s{s_t0} offen sc1", "ost"))
        if qt == 2: sh[g+1].append(T(f"buffer_store_dwordx4 v[{OA+4}:{OA+7}], v9, s[{SWS}:{SWS+3}], s{s_t0} offen sc1", "ost"))
    g += 2
    gw = put(gwo, wo_items)
    print("wo ends gap", gw, file=sys.stderr)
    assert g <= 63*4, g
    print("ffn ends gap", gf, "publish ends gap", g, file=sys.stderr)
    a.wait(vm="k0", lg="qf1")
    stamp(a, cfg, 6)
    for m in qk(0): a(m)
    for t in range(NS):
        a.c(f"slot {t}")
        if t == 0: mf = qk(1) + [None, None]
        elif t < NS - 1: mf = qk(t + 1) + pv(t - 1)
        else: mf = pv(t - 1) + [None, pv(t)[0]]
        S = S_[t % 2]; P = P_[t % 2]
        for q in range(4):
            g = 4*t + q
            if mf[q]: a(mf[q])
            for it in sh[g]: it(a)
            b = S + 4*q
            for k in range(3): a(f"v_exp_f32 v{b+k}, v{b+k}")
            if xm[g]:
                a(xm[g][0])
                for it in xm[g][1:]: it(a)
            a(f"v_exp_f32 v{b+3}, v{b+3}")
            a(f"v_cvt_pk_bf16_f32 v{P+2*q}, v{b}, v{b+1}")
            a(f"v_cvt_pk_bf16_f32 v{P+2*q+1}, v{b+2}, v{b+3}")
            for l in xv[g]: a(l)
        if t == 47: stamp(a, cfg, 7)
    a(f"s_mov_b32 s{s_qt}, 3")
    a(f"s_mov_b32 s{s_chk}, 8")
    a(pv(NS - 1)[1])

O3 = OA + 48
def publish_last(a, cfg):
    stamp(a, cfg, 8)
    a.label("L_pub")
    a(f"""
    s_lshl_b32 s{s_t1}, s{s_qt}, 15
    s_add_u32 s{s_t1}, s{s_t1}, s{s_ob}
    """)
    for it in o_write(O3, L_R3, 3, "ow"): it(a)
    a.wait(lg="ow")
    a("s_barrier")
    for it in o_read(O3, 240, L_R3, 3, "or3"): it(a)
    a.wait(lg="or3")
    for l in o_norm(O3, 240, 244): a(l)
    if cfg.force_slow_sm & 8: a("s_mov_b64 vcc, -1")
    a(f"""
    s_cmp_lg_u64 vcc, 0
    s_cselect_b32 s{s_t0}, s{s_chk}, 0
    v_permlane32_swap_b32 v244, v246
    v_permlane32_swap_b32 v245, v247
    s_cmp_lg_u32 s{s_t0}, 0
    s_cselect_b32 s{s_t1}, {OOB}, s{s_t1}
    s_or_b32 s{s_fail}, s{s_fail}, s{s_t0}
    """)
    a(f"buffer_store_dwordx4 v[244:247], v9, s[{SWS}:{SWS+3}], s{s_t1} offen sc1", "ost")
    a("s_cbranch_scc1 L_slow")
    stamp(a, cfg, 9)

def slow_softmax(a, cfg):
    S = S_[0]; P = P_[0]; K = S_[1]
    a(f"""
L_slow:
    s_ff1_i32_b32 s{s_qt}, s{s_fail}
    s_bitset0_b32 s{s_fail}, s{s_qt}
    s_mov_b32 s{s_chk}, 0
    s_mul_i32 s{s_t0}, s{s_qt}, {WVSZ}
    s_add_u32 s{s_t0}, s{s_t0}, {L_WV + L_QX}
    v_add_u32 v240, s{s_t0}, v{v_l16}
    ds_read_b128 v[{QF}:{QF+3}], v240
    ds_read_b128 v[{QF+4}:{QF+7}], v240 offset:1024
    s_sub_u32 s{s_t0}, s{s_kvc}, 65536
    v_mov_b32 v241, 0xff800000
    s_waitcnt vmcnt(0) lgkmcnt(0)
L_slow1:
    buffer_load_dwordx4 v[{K}:{K+3}], v{v_l16}, s[{SWS}:{SWS+3}], s{s_t0} offen sc1
    buffer_load_dwordx4 v[{K+4}:{K+7}], v{v_l16}, s[{SWS}:{SWS+3}], s{s_t0} offen offset:1024 sc1
    s_waitcnt vmcnt(0)
    v_mfma_f32_32x32x16_bf16 v[{S}:{S+15}], v[{K}:{K+3}], v[{QF}:{QF+3}], 0
    v_mfma_f32_32x32x16_bf16 v[{S}:{S+15}], v[{K+4}:{K+7}], v[{QF+4}:{QF+7}], v[{S}:{S+15}]
    """)
    for k in range(8): a(f"v_max3_f32 v241, v241, v{S+2*k}, v{S+2*k+1}")
    a(f"""
    s_add_u32 s{s_t0}, s{s_t0}, 4096
    s_cmp_lt_u32 s{s_t0}, s{s_kvc}
    s_cbranch_scc1 L_slow1
    v_mov_b32 v242, v241
    s_nop 1
    v_permlane32_swap_b32 v241, v242
    v_max_f32 v241, v241, v242
    ds_write_b32 v8, v241 offset:{L_MX - L_L}
    s_waitcnt lgkmcnt(0)
    s_barrier
    ds_read_b128 v[244:247], v14 offset:{L_MX - L_L}
    s_sub_u32 s{s_t0}, s{s_kvc}, 65536
    """)
    for k in range(16): a(f"v_mov_b32 v{O3+k}, 0")
    a(f"""
    s_waitcnt lgkmcnt(0)
    v_max3_f32 v241, v244, v245, v246
    v_max_f32 v241, v241, v247
L_slow2:
    buffer_load_dwordx4 v[{K}:{K+3}], v{v_l16}, s[{SWS}:{SWS+3}], s{s_t0} offen sc1
    buffer_load_dwordx4 v[{K+4}:{K+7}], v{v_l16}, s[{SWS}:{SWS+3}], s{s_t0} offen offset:1024 sc1
    buffer_load_dwordx4 v[{K+8}:{K+11}], v{v_l16}, s[{SWS}:{SWS+3}], s{s_t0} offen offset:2048 sc1
    buffer_load_dwordx4 v[{K+12}:{K+15}], v{v_l16}, s[{SWS}:{SWS+3}], s{s_t0} offen offset:3072 sc1
    s_waitcnt vmcnt(0)
    v_mfma_f32_32x32x16_bf16 v[{S}:{S+15}], v[{K}:{K+3}], v[{QF}:{QF+3}], 0
    v_mfma_f32_32x32x16_bf16 v[{S}:{S+15}], v[{K+4}:{K+7}], v[{QF+4}:{QF+7}], v[{S}:{S+15}]
    """)
    for k in range(16): a(f"v_sub_f32 v{S+k}, v{S+k}, v241")
    for k in range(16): a(f"v_exp_f32 v{S+k}, v{S+k}")
    for k in range(8): a(f"v_cvt_pk_bf16_f32 v{P+k}, v{S+2*k}, v{S+2*k+1}")
    a(f"""
    v_mfma_f32_32x32x16_bf16 v[{O3}:{O3+15}], v[{K+8}:{K+11}], v[{P}:{P+3}], v[{O3}:{O3+15}]
    v_mfma_f32_32x32x16_bf16 v[{O3}:{O3+15}], v[{K+12}:{K+15}], v[{P+4}:{P+7}], v[{O3}:{O3+15}]
    s_add_u32 s{s_t0}, s{s_t0}, 4096
    s_cmp_lt_u32 s{s_t0}, s{s_kvc}
    s_nop 15
    s_cbranch_scc1 L_slow2
    s_branch L_pub
    """)


XN = 32; X32 = 48; YB = 112

def o_load(a, qt, tag):
    a(f"s_add_u32 s{s_t0}, s{s_oc}, {32768*qt}")
    for hh in range(4):
        r = OF + 16*qt + 4*hh
        a(f"buffer_load_dwordx4 v[{r}:{r+3}], v{v_l16}, s[{SWS}:{SWS+3}], s{s_t0} offen offset:{1024*hh} sc1", tag)

def o_check(a, qt):
    r = OF + 16*qt
    a.wait(vm=f"ol{qt}")
    a.label(f"L_ochk{qt}")
    a(f"v_max3_u32 v24, v{r}, v{r+1}, v{r+2}")
    a(f"v_max3_u32 v25, v{r+3}, v{r+4}, v{r+5}")
    for k in range(6, 14, 4):
        a(f"v_max3_u32 v24, v24, v{r+k}, v{r+k+1}")
        a(f"v_max3_u32 v25, v25, v{r+k+2}, v{r+k+3}")
    a(f"v_max3_u32 v24, v24, v{r+14}, v{r+15}")
    a(f"v_max_u32 v24, v24, v25")
    a(f"v_cmp_eq_u32 vcc, -1, v24")
    a(f"s_cbranch_vccnz L_ort{qt}")
    a.label(f"L_ook{qt}")

def o_retry(a, cfg, qt):
    a.label(f"L_ort{qt}")
    a(f"""
    s_add_u32 s{s_cnt}, s{s_cnt}, 1
    s_cmp_gt_u32 s{s_cnt}, {cfg.spin}
    s_cbranch_scc1 L_ook{qt}
    """)
    o_load(a, qt, None)
    a("s_waitcnt vmcnt(0)")
    a(f"s_branch L_ochk{qt}")

def p3_mm(a, qt, shadow):
    D = OA + 16*qt
    for hh in range(4):
        for ct in range(4):
            c = "0" if hh == 0 else f"v[{D+4*ct}:{D+4*ct+3}]"
            a(f"v_mfma_f32_16x16x32_bf16 v[{D+4*ct}:{D+4*ct+3}], a[{16*hh+4*ct}:{16*hh+4*ct+3}], v[{OF+16*qt+4*hh}:{OF+16*qt+4*hh+3}], {c}")
            if shadow and hh >= 2: shadow.pop(0)(a)

def p3_wr(qt):
    D = OA + 16*qt; off = L_R + 4096*qt if qt < 3 else L_R3
    return [T(f"ds_write_b128 v10, v[{D+4*ct}:{D+4*ct+3}] offset:{off + 1024*ct}", "pw") for ct in range(4)]
def p3_rd(a, qt):
    D = OA + 16*qt; off = L_R + 4096*qt if qt < 3 else L_R3
    for w in range(4):
        a(f"ds_read_b128 v[{D+4*w}:{D+4*w+3}], v{12 + w//2} offset:{(w%2)*WVSZ + off}", f"pr{qt}")
def p3_fin(a, qt):
    D = OA + 16*qt; G = XN + 4*qt; X = X32 + 4*qt
    a(f"s_add_u32 s{s_t0}, s{s_outb}, {32*896*qt}")
    a.wait(lg=f"pr{qt}")
    a(f"""
    v_pk_add_f32 v[{D}:{D+1}], v[{D}:{D+1}], v[{D+4}:{D+5}]
    v_pk_add_f32 v[{D+2}:{D+3}], v[{D+2}:{D+3}], v[{D+6}:{D+7}]
    v_pk_add_f32 v[{D+8}:{D+9}], v[{D+8}:{D+9}], v[{D+12}:{D+13}]
    v_pk_add_f32 v[{D+10}:{D+11}], v[{D+10}:{D+11}], v[{D+14}:{D+15}]
    v_pk_add_f32 v[{D}:{D+1}], v[{D}:{D+1}], v[{D+8}:{D+9}]
    v_pk_add_f32 v[{D+2}:{D+3}], v[{D+2}:{D+3}], v[{D+10}:{D+11}]
    v_pk_fma_f32 v[{D}:{D+1}], v[{D}:{D+1}], v[{G}:{G+1}], v[{X}:{X+1}]
    v_pk_fma_f32 v[{D+2}:{D+3}], v[{D+2}:{D+3}], v[{G+2}:{G+3}], v[{X+2}:{X+3}]
    v_cvt_pk_bf16_f32 v{D}, v{D}, v{D+1}
    v_cvt_pk_bf16_f32 v{D+1}, v{D+2}, v{D+3}
    """)
    a(f"buffer_store_dwordx2 v[{D}:{D+1}], v{v_out}, s[{SOUT}:{SOUT+3}], s{s_t0} offen", "out")

def p3(a, cfg):
    a.c("output stage")
    a(f"s_mov_b32 s{s_cnt}, 0")
    a.wait(vm="sigBl")
    a(f"""
L_sigB_chk:
    v_cmp_eq_u32 vcc, 0, v4
    s_and_b32 s{s_t0}, vcc_lo, 0xff
    s_cbranch_scc1 L_sigB
L_sigB_ok:
    """)
    for qt in range(3): o_load(a, qt, f"ol{qt}")
    a(f"""
    v_lshrrev_b32 v24, 4, v{v_lane}
    v_bfe_u32 v25, v{v_lane}, 2, 2
    v_lshl_add_u32 v25, v24, 3, v25
    v_and_b32 v26, 3, v{v_lane}
    v_lshlrev_b32 v26, 3, v26
    v_lshl_add_u32 v25, v25, 7, v26
    v_and_b32 v26, 8, v{v_lane}
    v_lshl_add_u32 v25, v26, 3, v25
    v_cmp_gt_u32 vcc, 3, v24
    v_add_u32 v5, s{s_c}, v25
    v_mov_b32 v26, 512
    v_xor_b32 v6, 64, v5
    v_cndmask_b32 v26, 0, v26, vcc
    v_add_u32 v7, v5, v26
    v_add_u32 v27, v6, v26
    s_lshl_b32 s{s_t0}, s{s_p}, 6
    s_add_u32 s{s_t0}, s{s_t0}, {L_ST}
    v_and_b32 v24, 15, v{v_lane}
    v_lshl_add_u32 v24, v24, 2, s{s_t0}
    """)
    a(f"ds_read2_b32 v[240:241], v24 offset0:0 offset1:32", "st")
    a(f"ds_read2_b32 v[242:243], v24 offset0:64 offset1:96", "st")
    a.wait(vm=("wo", "xv"))
    tr = []
    for hh in range(4):
        for ct in range(4):
            for e in (0, 1):
                r = 16*hh + 4*ct + 2*e
                tr.append((f"ds_read_b64_tr_b16 a[{r}:{r+1}], v{[[5,6],[7,27]][e][ct//2]} offset:{hh*28*128 + 32*(ct&1)}", "wt"))
    for t in tr[:8]: a(*t)
    a.wait(lg="st")
    tr = tr[8:]
    for qt in range(4):
        st = 240 + qt; x = X32 + 4*qt; n = XN + 4*qt
        L = lines(f"""
        v_and_b32 v244, s{s_hi16}, v{st}
        v_lshlrev_b32 v{st}, 16, v{st}
        v_rcp_f32 v244, v244
        v_lshlrev_b32 v{x}, 16, v{XV+2*qt}
        v_and_b32 v{x+1}, s{s_hi16}, v{XV+2*qt}
        v_mul_f32 v246, v{st}, v244
        v_lshlrev_b32 v{x+2}, 16, v{XV+2*qt+1}
        v_and_b32 v{x+3}, s{s_hi16}, v{XV+2*qt+1}
        v_pk_fma_f32 v[{n}:{n+1}], v[{x}:{x+1}], v[244:245], v[246:247] op_sel_hi:[1,0,0] neg_lo:[0,0,1] neg_hi:[0,0,1]
        v_pk_fma_f32 v[{n+2}:{n+3}], v[{x+2}:{x+3}], v[244:245], v[246:247] op_sel_hi:[1,0,0] neg_lo:[0,0,1] neg_hi:[0,0,1]
        """)
        for i, l in enumerate(L):
            a(l)
            if tr and i < 6: a(*tr.pop(0))
    a(f"""
    s_lshl_b32 s{s_t2}, s{s_tb}, 3
    s_add_u32 s{s_t2}, s{s_t2}, s{s_p}
    s_lshr_b32 s{s_t0}, s{s_ia}, 4
    s_and_b32 s{s_t0}, s{s_t0}, 0x79
    s_cmp_eq_u32 s{s_t0}, s{s_t2}
    s_cbranch_scc1 L_spA
L_spA_ret:
    s_lshr_b32 s{s_t0}, s{s_ib}, 4
    s_and_b32 s{s_t0}, s{s_t0}, 0x79
    s_cmp_eq_u32 s{s_t0}, s{s_t2}
    s_cbranch_scc1 L_spB
L_spB_ret:
    v_mov_b32 v244, {hex(f2u(-LOG2E))}
    """)
    for qt in range(4):
        n = XN + 4*qt; z = 128 + 4*qt
        a(f"""
        v_pk_mul_f32 v[{z}:{z+1}], v[{n}:{n+1}], v[244:245] op_sel_hi:[1,0]
        v_pk_mul_f32 v[{z+2}:{z+3}], v[{n+2}:{n+3}], v[244:245] op_sel_hi:[1,0]
        v_exp_f32 v{z}, v{z}
        v_exp_f32 v{z+1}, v{z+1}
        v_exp_f32 v{z+2}, v{z+2}
        v_exp_f32 v{z+3}, v{z+3}
        v_pk_add_f32 v[{z}:{z+1}], v[{z}:{z+1}], 1.0 op_sel_hi:[1,0]
        v_pk_add_f32 v[{z+2}:{z+3}], v[{z+2}:{z+3}], 1.0 op_sel_hi:[1,0]
        v_rcp_f32 v{z}, v{z}
        v_rcp_f32 v{z+1}, v{z+1}
        v_rcp_f32 v{z+2}, v{z+2}
        v_rcp_f32 v{z+3}, v{z+3}
        v_pk_mul_f32 v[{n}:{n+1}], v[{n}:{n+1}], v[{z}:{z+1}]
        v_pk_mul_f32 v[{n+2}:{n+3}], v[{n+2}:{n+3}], v[{z+2}:{z+3}]
        """)
    stamp(a, cfg, 10)
    a.wait(lg="wt")
    pend = []
    for qt in range(3):
        o_check(a, qt)
        p3_mm(a, qt, pend)
        pend = p3_wr(qt)
    o_load(a, 3, "ol3")
    for it in pend: it(a)
    a.wait(lg="pw")
    a("s_barrier")
    for qt in range(3): p3_rd(a, qt)
    for qt in range(3): p3_fin(a, qt)
    stamp(a, cfg, 11)
    o_check(a, 3)
    stamp(a, cfg, 12)
    p3_mm(a, 3, [])
    for it in p3_wr(3): it(a)
    a.wait(lg="pw")
    a("s_barrier")
    p3_rd(a, 3)
    p3_fin(a, 3)

def special(a, cfg):
    a(f"""
L_sigB:
    s_add_u32 s{s_cnt}, s{s_cnt}, 1
    s_cmp_gt_u32 s{s_cnt}, {cfg.spin}
    s_cbranch_scc1 L_sigB_ok
    buffer_load_dword v4, v3, s[{SDB}:{SDB+3}], 0 offen offset:128 sc1
    s_waitcnt vmcnt(0)
    s_branch L_sigB_chk
L_spA:
    s_mov_b32 s{s_qt}, 0
    s_branch L_sp
L_spB:
    s_mov_b32 s{s_qt}, 1
    s_mov_b32 s{s_ia}, s{s_ib}
    s_mov_b32 s{s_k1}, s{s_k2}
L_sp:
    v_and_b32 v24, 15, v{v_lane}
    v_cmp_gt_u32 vcc, 14, v24
    v_mov_b32 v25, {OOB}
    s_lshl_b32 s{s_t0}, s{s_qt}, 3
    s_add_u32 s{s_t0}, s{s_t0}, s{s_x}
    s_mul_i32 s{s_t0}, s{s_t0}, {224*256}
    s_lshl_b32 s{s_t1}, s{s_w}, 10
    s_add_u32 s{s_t0}, s{s_t0}, s{s_t1}
    s_add_u32 s{s_t3}, s{s_t0}, {WS_Y}
    v_cndmask_b32 v25, v25, v{v_l16}, vcc
L_sp_ld:
    """)
    for i in range(14):
        a(f"s_add_u32 s{s_t0}, s{s_t3}, {4096*i}")
        a(f"buffer_load_dwordx4 v[{YB+4*i}:{YB+4*i+3}], v25, s[{SWS}:{SWS+3}], s{s_t0} offen sc1")
    a(f"""
    s_add_u32 s{s_cnt}, s{s_cnt}, 1
    v_mov_b32 v26, 0
    s_waitcnt vmcnt(0)
    """)
    for k in range(28): a(f"v_max3_u32 v26, v26, v{YB+2*k}, v{YB+2*k+1}")
    a(f"""
    v_cmp_eq_u32 vcc, -1, v26
    s_cmp_gt_u32 s{s_cnt}, {cfg.spin}
    s_cbranch_scc1 L_sp_go
    s_cbranch_vccnz L_sp_ld
L_sp_go:
    """)
    n = 14
    while n > 1:
        h = n // 2
        for i in range(h):
            d = YB + 4*i; e = YB + 4*(n - 1 - i)
            a(f"v_pk_add_f32 v[{d}:{d+1}], v[{d}:{d+1}], v[{e}:{e+1}]")
            a(f"v_pk_add_f32 v[{d+2}:{d+3}], v[{d+2}:{d+3}], v[{e+2}:{e+3}]")
        n -= h
    a(f"""
    s_lshl_b32 s{s_t0}, s{s_qt}, 10
    s_add_u32 s{s_t0}, s{s_t0}, {L_FP}
    s_lshl_b32 s{s_t1}, s{s_w}, 8
    s_add_u32 s{s_t1}, s{s_t1}, s{s_t0}
    v_permlane32_swap_b32 v{YB}, v{YB+2}
    v_permlane32_swap_b32 v{YB+1}, v{YB+3}
    v_add_f32 v{YB}, v{YB}, v{YB+2}
    v_add_f32 v{YB+1}, v{YB+1}, v{YB+3}
    v_lshrrev_b32 v26, 4, v{v_lane}
    v_lshl_add_u32 v25, v24, 4, s{s_t1}
    v_permlane16_swap_b32 v{YB}, v{YB+1}
    v_lshl_add_u32 v25, v26, 2, v25
    v_add_f32 v{YB}, v{YB}, v{YB+1}
    ds_write_b32 v25, v{YB}
    s_lshl_b32 s{s_t1}, s{s_w}, 6
    s_add_u32 s{s_t1}, s{s_t1}, s{s_t0}
    v_lshl_add_u32 v25, v26, 4, s{s_t1}
    ; sigmoid(r)
    s_and_b32 s{s_t0}, s{s_k1}, 0xfffff800
    s_cmp_lt_i32 s{s_t0}, 0
    s_cselect_b32 s{s_t1}, 0x80000000, -1
    s_xor_b32 s{s_t0}, s{s_t0}, s{s_t1}
    v_mov_b32 v26, s{s_t0}
    v_cvt_pk_bf16_f32 v26, v26, v26
    v_and_b32 v26, s{s_hi16}, v26
    v_mul_f32 v26, {hex(f2u(-LOG2E))}, v26
    v_exp_f32 v26, v26
    s_and_b32 s{s_t0}, s{s_ia}, 15
    v_add_f32 v26, 1.0, v26
    v_rcp_f32 v26, v26
    v_cmp_eq_u32 s[{s_sv}:{s_sv+1}], s{s_t0}, v24
    s_waitcnt lgkmcnt(0)
    s_barrier
    ds_read_b128 v[{YB}:{YB+3}], v25
    ds_read_b128 v[{YB+4}:{YB+7}], v25 offset:256
    ds_read_b128 v[{YB+8}:{YB+11}], v25 offset:512
    ds_read_b128 v[{YB+12}:{YB+15}], v25 offset:768
    s_bfe_u32 s{s_t0}, s{s_ia}, 0x20005
    s_waitcnt lgkmcnt(0)
    v_pk_add_f32 v[{YB}:{YB+1}], v[{YB}:{YB+1}], v[{YB+4}:{YB+5}]
    v_pk_add_f32 v[{YB+2}:{YB+3}], v[{YB+2}:{YB+3}], v[{YB+6}:{YB+7}]
    v_pk_add_f32 v[{YB+8}:{YB+9}], v[{YB+8}:{YB+9}], v[{YB+12}:{YB+13}]
    v_pk_add_f32 v[{YB+10}:{YB+11}], v[{YB+10}:{YB+11}], v[{YB+14}:{YB+15}]
    v_pk_add_f32 v[{YB}:{YB+1}], v[{YB}:{YB+1}], v[{YB+8}:{YB+9}]
    v_pk_add_f32 v[{YB+2}:{YB+3}], v[{YB+2}:{YB+3}], v[{YB+10}:{YB+11}]
    """)
    for qt in range(4):
        n = XN + 4*qt
        a(f"""
        s_cmp_eq_u32 s{s_t0}, {qt}
        s_cselect_b64 exec, s[{s_sv}:{s_sv+1}], 0
        v_pk_fma_f32 v[{n}:{n+1}], v[{YB}:{YB+1}], v[26:27], v[{n}:{n+1}] op_sel_hi:[1,0,1]
        v_pk_fma_f32 v[{n+2}:{n+3}], v[{YB+2}:{YB+3}], v[26:27], v[{n+2}:{n+3}] op_sel_hi:[1,0,1]
        """)
    a(f"""
    s_mov_b64 exec, -1
    s_cmp_eq_u32 s{s_qt}, 0
    s_cbranch_scc1 L_spA_ret
    s_branch L_spB_ret
    """)

def prof_out(a, cfg):
    a("s_waitcnt vmcnt(0)")
    stamp(a, cfg, 13)
    if cfg.probe >= 0:
        a(f"""
        s_sub_u32 s{s_t0}, s{s_stamp + cfg.probe}, s{s_stamp}
        s_lshl_b32 s{s_t0}, s{s_t0}, 2
        s_add_u32 s{s_t0}, s{s_t0}, 5000
L_probe:
        s_memrealtime s[{s_sv}:{s_sv+1}]
        s_waitcnt lgkmcnt(0)
        s_sub_u32 s{s_t1}, s{s_sv}, s{s_stamp}
        s_cmp_lt_u32 s{s_t1}, s{s_t0}
        s_cbranch_scc1 L_probe
        """)
        return
    a(f"""
    s_lshl_b32 s{s_t0}, s2, 2
    s_add_u32 s{s_t0}, s{s_t0}, s{s_w}
    s_lshl_b32 s{s_t0}, s{s_t0}, 6
    s_add_u32 s{s_t0}, s{s_t0}, {WS_PROF}
    v_mov_b32 v24, s{s_cnt}
    """)
    for i in range(14): a(f"v_writelane_b32 v24, s{s_stamp+i}, {i}")
    a(f"""
    v_lshlrev_b32 v25, 2, v{v_lane}
    s_mov_b64 exec, 0xffff
    buffer_store_dword v24, v25, s[{SWS}:{SWS+3}], s{s_t0} offen
    """)

HEADER = open(__file__.replace("gen/gen.py", "cdna_kernels/recurrent_scan__mha_block__moe_arch_mod__prompt.s.ref").replace("gen.py", "../cdna_kernels/recurrent_scan__mha_block__moe_arch_mod__prompt.s.ref") if "gen/gen.py" not in __file__ else __file__.replace("gen/gen.py", "cdna_kernels/recurrent_scan__mha_block__moe_arch_mod__prompt.s.ref")).read().split("; Override launch")[0]

def build(cfg):
    a = Asm(); a.verbose = getattr(cfg, "verbose", False)
    prologue(a, cfg)
    y_addr(a)
    a(f"""
    v_lshrrev_b32 v24, 5, v{v_lane}
    v_and_b32 v25, 31, v{v_lane}
    v_lshlrev_b32 v24, 18, v24
    v_lshl_add_u32 v30, v25, 6, v24
    s_cmp_eq_u32 s{s_p}, 0
    s_cbranch_scc0 L_typeV
    """)
    snap = (list(a.vm), list(a.lg))
    p1_main(a, cfg, 0)
    a("s_branch L_join")
    end0 = (list(a.vm), list(a.lg))
    a.vm, a.lg = snap
    a.label("L_typeV")
    p1_main(a, cfg, 1)
    assert end0 == (a.vm, a.lg)
    a.label("L_join")
    stamp(a, cfg, 2)
    q_phase(a, cfg)
    poll_check(a, cfg)
    q_epilogue(a, cfg)
    attention(a, cfg)
    publish_last(a, cfg)
    p3(a, cfg)
    if cfg.prof: prof_out(a, cfg)
    a("s_endpgm")
    spin_sigA(a, cfg, 0); spin_sigA(a, cfg, 1)
    poll_slow(a, cfg)
    for qt in range(4): o_retry(a, cfg, qt)
    special(a, cfg)
    slow_softmax(a, cfg)
    a.label("L_end")
    a("s_endpgm")
    print("auto nops:", a.nops, file=sys.stderr)
    return HEADER + f"""; Generated by gen/gen.py (hand-written generator). One persistent workgroup per CU.
; @launch grid=(256,1,1) block=(256,1,1) lds={LDS_SIZE}
.amdgcn_target "amdgcn-amd-amdhsa--gfx950"
.text
.globl {NAME}
.p2align 8
.type {NAME},@function
{NAME}:
""" + a.text() + f""".section .rodata,"a"
.p2align 6
.amdhsa_kernel {NAME}
  .amdhsa_next_free_vgpr 512
  .amdhsa_next_free_sgpr 102
  .amdhsa_accum_offset 256
  .amdhsa_group_segment_fixed_size 0
  .amdhsa_kernarg_size 88
  .amdhsa_user_sgpr_count 2
  .amdhsa_user_sgpr_kernarg_segment_ptr 1
  .amdhsa_system_sgpr_workgroup_id_x 1
.end_amdhsa_kernel
"""

if __name__ == "__main__":
    cfg = Cfg()
    out = sys.argv[1]
    for kv in sys.argv[2:]:
        k, val = kv.split("=")
        setattr(cfg, k, int(val))
    open(out, "w").write(build(cfg))
```

```python
import sys, math, struct
from asmlib import *

NAME = "recurrent_scan__mha_block__moe_arch_mod__prompt_kernel"
def f2u(x): return struct.unpack('<I', struct.pack('<f', x))[0]

WS_KV   = 0
WS_ST   = 0x400000
WS_Z    = 0x500000
WS_O    = 0x900000
WS_Y    = 0xB00000
WS_F    = 0xC00000
WS_PROF = 0xD00000
WS_SIZE = 0x1000000
OOB     = 0x40000000

L_WV  = 57344
WVSZ  = 24576
L_WQ  = 16384
L_QX  = 0
L_G   = 2048
L_U   = 4096
L_WD  = 6144
L_R   = 10240
L_R3  = 2048
L_MISC = L_WV + 4 * WVSZ
L_ST  = L_MISC
L_L   = L_MISC + 512
L_MX  = L_MISC + 3584
L_HS  = L_MISC + 4096
LDS_SIZE = 163840

SX, SW, SWS, SWR, SDB, SOUT, SWO, SG, SU, SWD = 28, 32, 36, 40, 44, 48, 52, 56, 60, 64
s_pc = 26
s_w, s_x, s_j, s_p, s_tb, s_h, s_xcc = 3, 4, 5, 6, 7, 8, 10
s_t0, s_t1, s_t2, s_t3 = 11, 12, 13, 14
s_lw = 17
s_wmask = 18; s_pad = 18
s_lo = 20
s_ones = 22
s_kv0, s_kv1 = 23, 24
s_fo = 25
s_sp = 69; s_cnt = 70
s_k1, s_k2, s_ia, s_ib, s_fail = 71, 72, 73, 74, 75
s_qt, s_chk = 76, 77
s_ob, s_oc = 78, 79
s_lw2 = 80; s_hi16 = 81
s_sv = 82
s_outb = 85; s_lead = 86
s_kvc, s_gu0, s_gu1, s_wd0, s_wd1, s_wo, s_wol, s_zin, s_cf, s_cr, s_st, s_fr, s_sts, s_ocl = range(88, 102)
s_sa, s_sb = 9, 15
s_md = 16
s_cg, s_ro = 40, 41
XO = [68, 69, 71, 72, 73, 74, 75]
WO_ = [9, 15, 16, 26, 27, 84, 87]

v_lane = 1; v_l16 = 2
XF = 128; ACC0 = 64; ACC1 = 80; ACCQ = 96; RSB = 112; PK = 240
CS0 = 32; CS1 = 36; CSQ = 40; SEL = 44; XOP = 48; WOP0 = 52; WOP1 = 56
WF = 192; EF = WF + 32
PARK = 64
QF = 32; OA = 64; S_ = [128, 144]; P_ = [160, 168]
v_l0 = 21; v_out = 22; v_cs = 23; v_l4 = 31
ZER = 244; SPC = 248
vGU, vWD, vGT, vVL, vWO, vLW, vH1, vZC, vHW, vZS, vZL, vY = 3, 4, 5, 6, [7, 8, 9, 11], 10, 12, 13, 14, 15, 16, 17
vR, vLr, vO2, vO1, vT = [18, 19, 20], 23, 24, 25, [26, 27, 28, 29]
LOG2E = 1.4426950408889634
QSCALE = 28 ** -0.5 * LOG2E
L_LO = (127 - 40) << 23
L_RNG = 80 << 23

class Cfg:
    prof = 0; cyc = 0; probe = -1; verbose = 0
    spin = 200000
    fto = 64
    force_slow_kv = 0; force_slow_sm = 0
    sched = 22111; qsched = 331; pipe_to = 5
    rt = 1; rx = 0; rp = 0; pfx = 1; pre_n = 40; sig_at = 3; plain_n = 3; xv_at = 6
    flag_at = 18; g_pre = 2; qla = 5; poll_at = 1
    kv_pre = 3; kvs = 222200001220; kv_lead = 8; clr_step = 0; fb_step = 0; slow_at = 74; slow_gap = 0; nt = 1
    cf_at = 56; cl_at = 110; f1_at = 120; f2_at = 178; wo_at = 140; xv_at = 100; ol_at = 226; z_lat = 16; tr_n = 32; sgc_at = 196; wo_lat = 14; cl_lat = 16
    o3_at = 2; ol_in = 0; ol_pre = 5; ol_mid = 5; ol_mid2 = 5; outf = 0

def stamp(a, cfg, i, mode=1):
    if (cfg.prof == mode or (cfg.prof and i in (1, 13))) and (cfg.probe < 0 or cfg.probe == i or i == 13):
        if a.prev_stamp is not None: a(f"v_writelane_b32 v0, s0, {a.prev_stamp}")
        a(f"{'s_memtime' if cfg.cyc else 's_memrealtime'} s[0:1]")
        a.prev_stamp = i
        if i == 13:
            a("s_waitcnt lgkmcnt(0)")
            a(f"v_writelane_b32 v0, s0, 13")

def W(vm=(), lg=()):
    f = lambda a: a.wait(vm=vm, lg=lg)
    f.ch = "."; return f
def T(text, tag=None):
    f = lambda a: a(text, tag)
    f.ch = "|" if "barrier" in text else "," if text.startswith("s_") else "d" if text.startswith("ds_") else (tag or "?")[0].upper()
    return f
T_ = T
def lines(s): return [x.strip() for x in s.strip().split("\n") if x.strip() and not x.strip().startswith(";")]
def run_all(a, L):
    for t in L:
        t(a) if callable(t) else a(t[0], t[1])
def merge(A, B, nb=2):
    R = []; A = list(A); B = list(B)
    while A or B:
        if A: R.append(A.pop(0))
        for _ in range(nb):
            if B: R.append(B.pop(0))
    return R

def dma_x(i):
    L = [T(f"s_add_u32 m0, s{s_lw}, {(i % 4) * 4096}")]
    for rb in range(4):
        L.append((f"buffer_load_dwordx4 v{3+rb}, s[{SX}:{SX+3}], s{XO[i]} offen offset:{1024*rb} lds", f"x{i}"))
    return L
def dma_w(i):
    def w0(a):
        a(f"""
        s_add_u32 m0, s{s_lw2}, {i * 8192}
        s_mov_b64 exec, s[{s_wmask}:{s_wmask+1}]
        """)
        a(f"buffer_load_dwordx4 v7, s[{SW}:{SW+3}], s{WO_[i]} offen lds", f"w{i}")
        a(f"buffer_load_dwordx4 v8, s[{SW}:{SW+3}], s{WO_[i]} offen offset:1024 lds", f"w{i}")
        a("s_mov_b64 exec, -1")
    return [w0]
def dma_wq(i):
    return [T(f"s_add_u32 m0, s{s_lw}, {L_WQ + i*1024}"),
            (f"buffer_load_dwordx4 v9, s[{SW}:{SW+3}], s{WO_[i]} offen lds", f"q{i}")]
def chunk_offsets(i):
    return lines(f"""
    s_add_u32 s{s_qt}, s{s_qt}, 1
    s_cmp_eq_u32 s{s_qt}, 7
    s_cselect_b32 s{s_t1}, -6, 1
    s_lshl_b32 s{s_t0}, s{s_t1}, 7
    s_mul_i32 s{s_t1}, s{s_t1}, {64*2688}
    s_add_u32 s{XO[i]}, s{XO[i-1]}, s{s_t0}
    s_add_u32 s{WO_[i]}, s{WO_[i-1]}, s{s_t1}
    """)
def x_reads(i):
    return [(f"ds_read_b128 v[{XF+16*i+4*s_}:{XF+16*i+4*s_+3}], v{10+s_} offset:{(i%4)*4096}", f"xr{i}") for s_ in range(4)]

PARKED = []
def park(final, tmp):
    n = PARK + len(PARKED); PARKED.append((final, n))
    return f"v_accvgpr_write_b32 a{n}, v{tmp}"
vWP = 30; vQ0 = ACC1 + 6; vQ1 = ACC1 + 7

def later_setup():
    del PARKED[:]
    A, B, C, D, E = 64, 65, 66, 67, 68
    Q, J, R_, CC = 70, 71, 72, 73
    OB = 74
    return lines(f"""
    s_min_u32 s{s_t3}, s{s_j}, 27
    ; gate/up slice: rows 56x + 16w + 8e, columns 64*jj
    s_mul_i32 s{s_t0}, s{s_x}, 56
    s_lshl4_add_u32 s{s_t0}, s{s_w}, s{s_t0}
    s_mul_i32 s{s_t0}, s{s_t0}, 3584
    s_lshl_b32 s{s_t1}, s{s_t3}, 7
    s_add_u32 s{s_gu0}, s{s_t0}, s{s_t1}
    s_add_u32 s{s_gu1}, s{s_gu0}, {8*3584 - 1024}
    s_cmp_eq_u32 s{s_w}, 3
    s_cselect_b32 s{s_gu1}, {OOB}, s{s_gu1}
    ; down slice: rows 64*jj + 16w + 8e, columns 64x
    s_lshl2_add_u32 s{s_t2}, s{s_t3}, s{s_w}
    s_mul_i32 s{s_t0}, s{s_t2}, {16*896}
    s_lshl_b32 s{s_t1}, s{s_x}, 7
    s_add_u32 s{s_wd0}, s{s_t0}, s{s_t1}
    s_lshl_b32 s{s_t1}, s{s_w}, 8
    s_add_u32 s{s_ob}, s{s_ocl}, s{s_t1}
    s_lshl_b32 s{s_t1}, s{s_w}, 15
    s_add_u32 s{s_ocl}, s{s_ocl}, s{s_t1}
    s_lshl_b32 s{s_zin}, s{s_t2}, 11
    s_add_u32 s{s_zin}, s{s_zin}, {WS_Z}
    ; Y store base (s_cnt) and Z store base (s_sv)
    s_lshl_b32 s{s_t0}, s{s_x}, 8
    s_add_u32 s{s_sv}, s{s_t0}, s{s_zin}
    s_mul_i32 s{s_t0}, s{s_x}, {28*256}
    s_lshl_b32 s{s_cnt}, s{s_t2}, 6
    s_add_u32 s{s_cnt}, s{s_cnt}, s{s_t0}
    s_add_u32 s{s_cnt}, s{s_cnt}, {WS_Y}
    s_cmp_lt_u32 s{s_j}, 28
    s_cselect_b32 s{s_cnt}, s{s_cnt}, {OOB}
    s_cselect_b32 s{s_sv}, s{s_sv}, {OOB}
    s_cselect_b32 s{s_zin}, s{s_zin}, {OOB}
    s_cmp_lt_u32 s{s_x}, 7
    s_cselect_b32 s{s_cnt}, s{s_cnt}, {OOB}
    s_cselect_b32 s{s_zin}, s{s_zin}, {OOB}
    s_cselect_b32 s{s_wd0}, s{s_wd0}, {OOB}
    s_add_u32 s{s_wd1}, s{s_wd0}, {8*896 - 1024}
    ; output role: column group cg = j % 7, token rows (tb', th) = (2x + (u>>1), u&1), u = j / 7
    s_mul_i32 s{s_t0}, s{s_j}, 37
    s_lshr_b32 s{s_t0}, s{s_t0}, 8
    s_mul_i32 s{s_t1}, s{s_t0}, 7
    s_sub_u32 s{s_cg}, s{s_j}, s{s_t1}
    s_and_b32 s{s_t1}, s{s_t0}, 1
    s_lshr_b32 s{s_t0}, s{s_t0}, 1
    s_lshl1_add_u32 s{s_t0}, s{s_x}, s{s_t0}
    s_lshl3_add_u32 s{s_ro}, s{s_t0}, s{s_t1}          ; 8*tb' + th
    s_lshl2_add_u32 s{s_t0}, s{s_ro}, s{s_w}
    s_lshl_b32 s{s_t0}, s{s_t0}, 12
    s_add_u32 s{s_oc}, s{s_t0}, {WS_O}
    s_mul_i32 s{s_t0}, s{s_w}, {112*896}
    s_lshl_b32 s{s_t1}, s{s_cg}, 7
    s_add_u32 s{s_wo}, s{s_t0}, s{s_t1}
    s_mul_i32 s{s_t0}, s{s_ro}, {16*896}
    s_add_u32 s{s_outb}, s{s_t0}, s{s_t1}
    s_cmp_lt_u32 s{s_j}, 28
    s_cselect_b32 s{s_wo}, s{s_wo}, {OOB}
    s_cselect_b32 s{s_outb}, s{s_outb}, {OOB}
    s_cselect_b32 s{s_oc}, s{s_oc}, {OOB}
    s_mul_i32 s{s_wol}, s{s_w}, {112*128}
    ; cleared-flag row and own flag
    s_lshr_b32 s{s_t0}, s{s_tb}, 1
    s_lshl_b32 s{s_t0}, s{s_t0}, 12
    s_and_b32 s{s_t1}, s{s_tb}, 1
    s_lshl_b32 s{s_t1}, s{s_t1}, 8
    s_add_u32 s{s_t0}, s{s_t0}, s{s_t1}
    s_add_u32 s{s_cr}, s{s_t0}, {WS_F + 2048}
    s_lshl2_add_u32 s{s_t0}, s{s_h}, s{s_w}
    s_lshl2_add_u32 s{s_cf}, s{s_t0}, s{s_cr}
    ; consumer K/V base, stats base / store offset, flag record
    s_lshl_b32 s{s_kvc}, s{s_t0}, 16
    s_lshl_b32 s{s_st}, s{s_x}, 13
    s_add_u32 s{s_st}, s{s_st}, {WS_ST}
    s_lshl2_add_u32 s{s_t2}, s{s_tb}, s{s_w}
    s_lshl_b32 s{s_t0}, s{s_t2}, 7
    s_add_u32 s{s_sts}, s{s_t0}, s{s_st}
    s_cmp_eq_u32 s{s_p}, 0
    s_cselect_b32 s{s_sts}, s{s_sts}, {OOB}
    s_lshl4_add_u32 s{s_fr}, s{s_t2}, s{s_fo}
    ; ---- per lane
    v_lshrrev_b32 v{Q}, 4, v{v_lane}
    v_and_b32 v{J}, 15, v{v_lane}
    v_bfe_u32 v{R_}, v{v_lane}, 2, 2
    v_and_b32 v{CC}, 3, v{v_lane}
    v_mov_b32 v{OB}, {OOB}
    v_lshrrev_b32 v{A}, 3, v{v_lane}
    v_and_b32 v{B}, 7, v{v_lane}
    v_mul_u32_u24 v{C}, 3584, v{A}
    v_lshl_add_u32 v{C}, v{B}, 4, v{C}
    {park(vGU, C)}
    v_lshlrev_b32 v{C}, 8, v{A}
    v_lshl_add_u32 v{C}, v{B}, 4, v{C}
    {park(vZL, C)}
    ; V rows: row 8g + r <- column 7*((g+w)&3) + r, r = 7 <- the ones column
    v_add_u32 v{C}, s{s_w}, v{A}
    v_and_b32 v{C}, 3, v{C}
    v_mad_u32_u24 v{C}, v{C}, 7, v{B}
    v_cmp_eq_u32 vcc, 7, v{B}
    v_and_b32 v{D}, 32, v{v_lane}
    v_mul_u32_u24 v{E}, 896, v{A}
    v_cndmask_b32 v{C}, v{C}, 28, vcc
    v_add_lshl_u32 v{C}, v{C}, v{D}, 4
    {park(vVL, C)}
    v_lshl_add_u32 v{C}, v{B}, 4, v{E}
    {park(vWD, C)}
    ; wo image: 32-byte slot ^= (row >> 1) & 3
    v_lshlrev_b32 v{D}, 1, v{Q}
    v_xor_b32 v{D}, v{D}, v{B}
    v_lshl_add_u32 v{A}, v{D}, 4, v{E}
    {park(vWO[0], A)}
    v_add_u32 v{B}, 6144, v{A}
    {park(vWO[1], B)}
    v_add_u32 v{B}, 12288, v{A}
    {park(vWO[2], B)}
    v_add_u32 v{B}, 18432, v{A}
    {park(vWO[3], B)}
    v_and_b32 v{C}, 1, v{Q}
    v_lshl_add_u32 v{A}, v{C}, 3, v{R_}
    v_lshlrev_b32 v{A}, 7, v{A}
    v_lshl_add_u32 v{A}, v{CC}, 3, v{A}
    v_lshrrev_b32 v{B}, 5, v{v_lane}
    v_mul_u32_u24 v{D}, {WVSZ}, v{B}
    s_lshl_b32 s{s_t0}, s{s_w}, 5
    s_add_u32 s{s_t1}, s{s_t0}, {L_WV}
    v_add3_u32 v{A}, v{A}, v{D}, s{s_t1}
    {park(vGT, A)}
    v_lshl_add_u32 v{A}, v{Q}, 3, s{s_t0}
    v_mul_u32_u24 v{D}, 896, v{J}
    v_add_u32 v{v_out}, v{A}, v{D}
    v_add_u32 v{A}, s{s_lw}, v{v_l16}
    {park(vLW, A)}
    v_lshlrev_b32 v{v_l4}, 2, v{v_lane}
    ; h: read tok*128 + 16s ; write tok*128 + (16w + 4quad + rho)*2
    v_and_b32 v{E}, 1, v{v_lane}
    v_lshlrev_b32 v{A}, 7, v{E}
    v_add_u32 v{A}, {L_HS}, v{A}
    v_lshl_add_u32 v{D}, v{Q}, 4, v{A}
    {park(vH1, D)}
    v_and_b32 v{D}, 6, v{v_lane}
    v_lshl_add_u32 v{A}, v{D}, 2, v{A}
    v_lshl_add_u32 v{A}, v{Q}, 1, v{A}
    v_add_u32 v{A}, s{s_t0}, v{A}
    {park(vHW, A)}
    ; Z store: q*32 + tok*16 (+128 for up); Y store: tok*7*28*256 + q*16; one clear covers both
    v_lshlrev_b32 v{A}, 4, v{E}
    v_lshl_add_u32 v{A}, v{Q}, 5, v{A}
    v_add_u32 v{A}, s{s_sv}, v{A}
    v_mul_u32_u24 v{E}, {7*28*256}, v{E}
    v_cmp_gt_u32 vcc, 2, v{J}
    v_lshl_add_u32 v{E}, v{Q}, 4, v{E}
    v_add_u32 v{E}, s{s_cnt}, v{E}
    v_cndmask_b32 v{D}, v{OB}, v{A}, vcc
    {park(vZS, D)}
    v_cndmask_b32 v{D}, v{OB}, v{E}, vcc
    {park(vY, D)}
    v_and_b32 v{D}, 2, v{v_lane}
    v_cmp_gt_u32 vcc, 4, v{J}
    v_lshl_add_u32 v{A}, v{D}, 6, v{A}
    v_cmp_gt_u32 s[{s_sv}:{s_sv+1}], 6, v{J}
    v_cndmask_b32 v{A}, v{E}, v{A}, vcc
    s_add_u32 s{s_t1}, s{s_w}, 3
    v_cndmask_b32 v{A}, v{OB}, v{A}, s[{s_sv}:{s_sv+1}]
    {park(vZC, A)}
    ; partial tiles of waves w-1, w-2, w-3 (their slots 0, 1, 2)
    s_and_b32 s{s_t1}, s{s_t1}, 3
    s_mul_i32 s{s_t1}, s{s_t1}, {WVSZ}
    s_add_u32 s{s_t1}, s{s_t1}, {L_WV}
    v_add_u32 v{A}, s{s_t1}, v{v_l16}
    {park(vR[0], A)}
    s_xor_b32 s{s_t1}, s{s_w}, 2
    s_mul_i32 s{s_t1}, s{s_t1}, {WVSZ}
    s_add_u32 s{s_t1}, s{s_t1}, {L_WV + 1024}
    v_add_u32 v{A}, s{s_t1}, v{v_l16}
    {park(vR[1], A)}
    s_add_u32 s{s_t1}, s{s_w}, 1
    s_and_b32 s{s_t1}, s{s_t1}, 3
    s_mul_i32 s{s_t1}, s{s_t1}, {WVSZ}
    s_add_u32 s{s_t1}, s{s_t1}, {L_WV + 2048}
    v_add_u32 v{A}, s{s_t1}, v{v_l16}
    {park(vR[2], A)}
    v_lshlrev_b32 v{A}, 14, v{Q}
    v_lshl_add_u32 v{A}, v{J}, 4, v{A}
    {park(vO2, A)}
    v_cndmask_b32 v{A}, v{OB}, v{A}, s[{s_lo}:{s_lo+1}]
    {park(vO1, A)}
    ; wo transposed reads: row = 7s + r (+ 28hh + 4e), column tile slot k -> ((k ^ (row>>1)) & 3)
    v_mad_u32_u24 v{A}, v{Q}, 7, v{R_}
    v_lshrrev_b32 v{B}, 1, v{A}
    v_lshlrev_b32 v{A}, 7, v{A}
    v_lshl_add_u32 v{A}, v{CC}, 3, v{A}
    v_add_u32 v{A}, s{s_wol}, v{A}
    """) + [l for k in range(4) for l in lines(f"""
    s_add_u32 s{s_t1}, s{s_w}, {k}
    v_xor_b32 v{D}, s{s_t1}, v{B}
    v_and_b32 v{D}, 3, v{D}
    v_lshl_add_u32 v{D}, v{D}, 5, v{A}
    {park(vT[k], D)}
    """)] + lines(f"""
    s_lshl2_add_u32 s{s_t0}, s2, s{s_w}
    v_lshl_add_u32 v{A}, s{s_t0}, 2, v{CC}
    v_lshlrev_b32 v{A}, 7, v{A}
    {park(vWP, A)}
    """)

def prologue(a, cfg):
    a(f"""
    s_cmp_ge_u32 s2, 256
    s_cbranch_scc1 L_end
    s_load_dwordx2 s[{SX}:{SX+1}], s[0:1], 0
    s_load_dwordx2 s[{SW}:{SW+1}], s[0:1], 8
    s_load_dwordx2 s[{SWS}:{SWS+1}], s[0:1], 80
    s_load_dwordx2 s[{SWR}:{SWR+1}], s[0:1], 32
    s_getpc_b64 s[{s_pc}:{s_pc+1}]
L_pc:
    s_lshr_b32 s{s_j}, s2, 3
    v_lshrrev_b32 v10, 6, v0
    v_and_b32 v{v_lane}, 63, v0
    v_readfirstlane_b32 s{s_w}, v10
    v_lshl_add_u32 v10, s{s_j}, 2, v10
    v_and_b32 v11, 3, v0
    v_mad_u32_u24 v10, v10, 3, v11
    v_lshlrev_b32 v10, 7, v10
    v_min_u32 v10, L_end - L_pc, v10
    global_load_dword a0, v10, s[{s_pc}:{s_pc+1}]
    s_load_dwordx2 s[{SDB}:{SDB+1}], s[0:1], 72
    s_load_dwordx2 s[{SWO}:{SWO+1}], s[0:1], 16
    s_load_dwordx2 s[{SG}:{SG+1}], s[0:1], 40
    s_load_dwordx2 s[{SU}:{SU+1}], s[0:1], 48
    s_load_dwordx2 s[{SWD}:{SWD+1}], s[0:1], 56
    s_load_dwordx2 s[{SOUT}:{SOUT+1}], s[0:1], 64
    """)
    if cfg.prof:
        a(f"{'s_memtime' if cfg.cyc else 's_memrealtime'} s[{s_sv}:{s_sv+1}]")
    a(f"""
    s_and_b32 s{s_x}, s2, 7
    s_and_b32 s{s_p}, s{s_j}, 1
    s_lshr_b32 s{s_tb}, s{s_j}, 1
    s_mul_i32 s{s_t0}, s{s_p}, {cfg.rp}
    s_add_u32 s{s_t0}, s{s_t0}, {f"s{s_tb}" if cfg.rt else "0"}
    s_add_u32 s{s_t0}, s{s_t0}, {f"s{s_x}" if cfg.rx else "0"}
    s_mul_i32 s{s_t1}, s{s_t0}, 37
    s_lshr_b32 s{s_t1}, s{s_t1}, 8
    s_mul_i32 s{s_t1}, s{s_t1}, 7
    s_sub_u32 s{s_qt}, s{s_t0}, s{s_t1}
    v_lshrrev_b32 v10, 3, v{v_lane}
    v_and_b32 v11, 7, v{v_lane}
    v_lshrrev_b32 v12, 4, v{v_lane}
    v_xor_b32 v13, v11, v12
    v_mul_u32_u24 v3, 896, v10
    v_lshl_add_u32 v3, v13, 4, v3
    v_xor_b32 v4, 64, v3
    v_add_u32 v4, 6144, v4
    v_add_u32 v5, 12288, v3
    v_add_u32 v6, 12288, v4
    v_and_b32 v12, 1, v12
    v_lshlrev_b32 v12, 2, v12
    v_xor_b32 v12, v11, v12
    v_mul_u32_u24 v7, 2688, v10
    v_lshl_add_u32 v7, v12, 4, v7
    v_lshlrev_b32 v{v_l16}, 4, v{v_lane}
    s_mov_b32 s{SX+2}, {2048*896}
    s_mov_b32 s{SX+3}, 0x20000
    s_mov_b32 s{SW+2}, {448*2688}
    s_mov_b32 s{SW+3}, 0x20000
    s_mov_b32 s{SWS+2}, {WS_SIZE}
    s_mov_b32 s{SWS+3}, 0x20000
    s_cmp_eq_u32 s{s_p}, 0
    s_cselect_b32 s{SWR+2}, 896, 0
    s_mov_b32 s{SWR+3}, 0x20000
    s_mov_b32 s{s_wmask}, 0xF7F77F7F
    s_mov_b32 s{s_wmask+1}, s{s_wmask}
    s_lshl2_add_u32 s{s_t2}, s{s_tb}, s{s_w}
    s_mul_i32 s{s_t0}, s{s_t2}, {32*896}
    s_lshl_b32 s{s_t1}, s{s_qt}, 7
    s_add_u32 s{XO[0]}, s{s_t0}, s{s_t1}
    s_mul_i32 s{s_t0}, s{s_x}, 112
    s_lshl2_add_u32 s{s_t1}, s{s_qt}, s{s_w}
    s_mul_i32 s{s_t1}, s{s_t1}, {16*2688}
    s_add_u32 s{s_t0}, s{s_t0}, s{s_t1}
    s_mul_i32 s{s_t1}, s{s_p}, 48
    s_add_u32 s{WO_[0]}, s{s_t0}, s{s_t1}
    s_mul_i32 s{s_t1}, s{s_p}, 848
    s_add_u32 s{s_t1}, s{s_t1}, 896
    v_add_u32 v7, s{s_t1}, v7
    v_add_u32 v8, 20480, v7
    s_mul_i32 s{s_lw}, s{s_w}, {WVSZ}
    s_add_u32 s{s_lw}, s{s_lw}, {L_WV}
    s_lshl_b32 s{s_lw2}, s{s_w}, 11
    s_or_b32 s{s_lead}, s{s_j}, s{s_w}
    s_lshl_b32 s{s_fo}, s{s_x}, 12
    s_add_u32 s{s_fo}, s{s_fo}, {WS_F}
    s_lshl_b32 s{s_t0}, s{s_qt}, 6
    v_add_u32 v24, s{s_t0}, v0
    v_add_u32 v25, 192, v24
    v_subrev_u32 v12, 448, v24
    v_subrev_u32 v13, 448, v25
    v_min_u32 v24, v24, v12
    v_min_u32 v25, v25, v13
    v_lshlrev_b32 v24, 1, v24
    v_lshlrev_b32 v25, 1, v25
    v_and_b32 v28, 2, v0
    v_lshlrev_b32 v28, 5, v28
    v_xor_b32 v28, 112, v28
    v_lshl_add_u32 v28, v0, 7, v28
    """)
    for l in chunk_offsets(1): a(l)
    rest = lines(f"""
    v_and_b32 v26, 31, v{v_lane}
    v_lshrrev_b32 v15, 5, v{v_lane}
    v_bfe_u32 v16, v{v_lane}, 1, 3
    v_xor_b32 v16, v16, v15
    v_lshlrev_b32 v16, 4, v16
    v_lshl_add_u32 v16, v26, 7, v16
    v_add_u32 v10, s{s_lw}, v16
    v_xor_b32 v11, 32, v10
    v_xor_b32 v12, 64, v10
    v_xor_b32 v13, 96, v10
    s_lshl_b32 s{s_t3}, s{s_w}, 2
    s_add_u32 s{s_t3}, s{s_t3}, {L_L}
    v_lshl_add_u32 v{v_cs}, v26, 4, s{s_t3}
    v_bfe_u32 v16, v{v_lane}, 2, 2
    v_lshl_add_u32 v16, v15, 3, v16
    v_bfe_u32 v17, v{v_lane}, 4, 1
    v_and_b32 v18, 3, v{v_lane}
    v_lshl_add_u32 v17, v17, 2, v18          ; cgrp
    v_lshlrev_b32 v17, 3, v17                ; 8*cgrp
    s_lshl_b32 s{s_t3}, s{s_p}, 3
    v_add_u32 v18, s{s_t3}, v17
    v_and_b32 v18, 63, v18
    v_lshl_add_u32 v18, v16, 6, v18
    v_add_u32 v20, s{s_lw}, v18
    v_add_u32 v18, {L_WV + L_WQ}, v18
    v_add_u32 v19, {2*WVSZ}, v18
    v_add_u32 v15, 56, v17
    v_cmp_eq_u32 vcc, 56, v17
    v_mov_b32 v14, 120
    v_and_b32 v27, 8, v{v_lane}
    v_cndmask_b32 v14, v17, v14, vcc
    v_lshlrev_b32 v27, 3, v27                ; 64*bit1(row)
    v_lshl_add_u32 v27, v16, 7, v27
    v_xor_b32 v14, v14, v27
    v_xor_b32 v15, v15, v27
    v_add_u32 v16, s{s_lw2}, v14
    v_add_u32 v17, s{s_lw2}, v15
    v_mov_b32 v{SPC}, 0
    v_mov_b32 v{SPC+1}, 0
    v_mov_b32 v{SPC+3}, 0
    v_mov_b32 v{SPC+4}, 0
    v_mov_b32 v{SPC+5}, 0
    v_mov_b32 v{SPC+7}, 0
    s_mov_b32 s{s_ones}, 0x3f803f80
    v_lshrrev_b32 v26, 2, v{v_lane}
    v_xor_b32 v27, v26, v{v_lane}
    v_and_b32 v27, 4, v27
    v_cmp_eq_u32 vcc, 0, v27
    v_mov_b32 v27, s{s_ones}
    v_mov_b32 v60, 0
    v_cndmask_b32 v{SEL}, 0, v27, vcc
    v_cndmask_b32 v{SEL+1}, 0, v27, vcc
    v_cndmask_b32 v{SEL+2}, 0, v27, vcc
    v_cndmask_b32 v{SEL+3}, 0, v27, vcc
    v_mov_b32 v61, 0
    v_mov_b32 v62, 0
    v_mov_b32 v63, 0
    v_and_b32 v27, 3, v{v_lane}
    v_mul_u32_u24 v9, 2688, v26
    v_lshl_add_u32 v9, v27, 4, v9
    v_cmp_eq_u32 vcc, 0, v{v_lane}
    v_mov_b32 v{v_l0}, {OOB}
    s_getreg_b32 s{s_xcc}, hwreg(HW_REG_XCC_ID, 0, 4)
    v_cndmask_b32 v{v_l0}, v{v_l0}, 0, vcc
    s_add_u32 s{s_xcc}, s{s_xcc}, 1
    s_lshl1_add_u32 s{s_h}, s{s_x}, s{s_p}
    s_mov_b32 s{SDB+2}, 256
    s_mov_b32 s{SDB+3}, 0x20000
    s_mov_b32 s{SOUT+2}, {2048*896}
    s_mov_b32 s{SOUT+3}, 0x20000
    s_mov_b32 s{SWO+2}, {448*896}
    s_mov_b32 s{SWO+3}, 0x20000
    s_mov_b32 s{SG+2}, {448*3584}
    s_mov_b32 s{SG+3}, 0x20000
    s_mov_b32 s{SU+2}, {448*3584}
    s_mov_b32 s{SU+3}, 0x20000
    s_mov_b32 s{SWD+2}, {1792*896}
    s_mov_b32 s{SWD+3}, 0x20000
    s_mov_b32 s{s_lo}, -1
    s_mov_b32 s{s_lo+1}, 0
    s_mov_b32 s{s_hi16}, 0xffff0000
    s_lshl_b32 s{s_kv0}, s{s_x}, 19
    s_lshl_b32 s{s_t3}, s{s_t2}, 12
    s_add_u32 s{s_kv0}, s{s_kv0}, s{s_t3}
    s_lshl_b32 s{s_t3}, s{s_p}, 11
    s_add_u32 s{s_kv0}, s{s_kv0}, s{s_t3}
    s_add_u32 s{s_kv1}, s{s_kv0}, 0x40000
    s_lshl_b32 s{s_oc}, s{s_tb}, 17
    s_add_u32 s{s_oc}, s{s_oc}, {WS_O}
    s_lshl_b32 s{s_t3}, s{s_h}, 10
    s_add_u32 s{s_ocl}, s{s_oc}, s{s_t3}
    v_mov_b32 v{XOP+2}, 0
    v_mov_b32 v{XOP+3}, 0
    v_mov_b32 v{WOP0+2}, 0
    v_mov_b32 v{WOP0+3}, 0
    v_mov_b32 v{WOP1+2}, 0
    v_mov_b32 v{WOP1+3}, 0
    """)
    for l in rest[:cfg.pre_n]: a(l)
    rest = rest[cfg.pre_n:]
    a("s_waitcnt lgkmcnt(0)")
    if cfg.prof:
        a(f"v_writelane_b32 v0, s{s_sv}, 0")
    stamp(a, cfg, 1)
    a(f"""
    s_cmp_eq_u32 s{s_lead}, 0
    s_cbranch_scc1 L_clrF
L_clrF_ret:
    """)
    run_all(a, dma_x(0))
    a(f"buffer_load_ushort v{SPC+2}, v24, s[{SWR}:{SWR+3}], 0 offen", "wr")
    a(f"buffer_load_ushort v{SPC+6}, v25, s[{SWR}:{SWR+3}], 0 offen", "wr")
    run_all(a, dma_w(0))
    if cfg.pfx:
        a(f"""
        s_lshl2_add_u32 s{s_t0}, s2, s{s_w}
        s_mul_i32 s{s_t0}, s{s_t0}, {14*128}
        v_lshlrev_b32 v29, 7, v{v_lane}
        s_mov_b64 exec, 0x3fff
        """)
        a(f"buffer_load_dword a2, v29, s[{SX}:{SX+3}], s{s_t0} offen", "pfx")
        a("s_mov_b64 exec, -1")
    n0 = int(str(cfg.sched)[0])
    if n0 > 1: run_all(a, dma_x(1))
    for l in rest: a(l)
    for i in range(2, 7):
        for l in chunk_offsets(i): a(l)
    for l in later_setup(): a(l)
    if n0 > 1: run_all(a, dma_w(1))
    for i in range(2, n0):
        run_all(a, dma_x(i) + dma_w(i))
    stamp(a, cfg, 2, 2)
    a.wait(vm="wr")
    a(f"ds_write_b128 v28, v[{SPC}:{SPC+3}]", "sp")
    a(f"ds_write_b128 v28, v[{SPC+4}:{SPC+7}] offset:{192*128}", "sp")
    run_all(a, x_reads(0))
    a(f"""
    s_cmp_eq_u32 s{s_lead}, 0
    s_cbranch_scc1 L_sgA
L_sgA_ret:
    """)

def leader_code(a):
    a(f"""
L_clrF:
    v_mov_b32 v{ZER}, 0
    v_mov_b32 v{ZER+1}, 0
    v_mov_b32 v{ZER+2}, 0
    v_mov_b32 v{ZER+3}, 0
    buffer_store_dwordx4 v[{ZER}:{ZER+3}], v{v_l16}, s[{SWS}:{SWS+3}], s{s_fo} offen sc1
    buffer_store_dwordx4 v[{ZER}:{ZER+3}], v{v_l16}, s[{SWS}:{SWS+3}], s{s_fo} offen offset:1024 sc1
    buffer_store_dwordx4 v[{ZER}:{ZER+3}], v{v_l16}, s[{SWS}:{SWS+3}], s{s_fo} offen offset:2048 sc1
    s_branch L_clrF_ret
L_sgA:
    s_lshl_b32 s{s_t3}, s{s_x}, 2
    v_mov_b32 v{ZER}, 1
    buffer_store_dword v{ZER}, v{v_l0}, s[{SDB}:{SDB+3}], s{s_t3} offen sc1
    s_branch L_sgA_ret
    """)

def split3(c, t0, t1, o0):
    return lines(f"""
    v_and_b32 v{t0}, s{s_hi16}, v{c}
    v_sub_f32 v{t1}, v{c}, v{t0}
    v_lshrrev_b32 v{t0}, 16, v{t0}
    v_and_b32 v{c}, s{s_hi16}, v{t1}
    v_sub_f32 v{t1}, v{t1}, v{c}
    v_or_b32 v{o0}, v{t0}, v{c}
    """)

def p1_main(a, cfg, typ):
    def rd(i, s_):
        L = []
        for T in (0, 1):
            for e in (0, 1):
                r = WF + 8*s_ + 4*T + 2*e
                L.append((f"ds_read_b64_tr_b16 a[{r}:{r+1}], v{14+T} offset:{(64*i+16*s_+4*e)*128}", f"r{i}_{s_}"))
        return L
    def erd(i):
        return [(f"ds_read_b64_tr_b16 a[{EF+4*T+2*e}:{EF+4*T+2*e+1}], v{16+T} offset:{(64*i+4*e)*128}", f"e{i}") for T in (0, 1) for e in (0, 1)]
    piped = lambda i: 0 < i <= cfg.pipe_to
    for i in range(7):
        a.c(f"chunk {i}")
        last = i == 6
        extra = []
        sch = [int(ch) for ch in str(cfg.sched).ljust(8, "0")]
        c0_ = sum(sch[:i+1])
        for c in range(c0_, c0_ + sch[i+1]):
            assert c - 4 <= i
            extra += dma_x(c) + dma_w(c)
        if i == cfg.sig_at:
            extra.append((f"buffer_load_dword v29, v{v_l4}, s[{SDB}:{SDB+3}], 0 offen sc1", "sigld"))
            extra.append((f"buffer_load_dword a1, v{v_l16}, s[{SWS}:{SWS+3}], s{s_fo} offen", "pref"))
        qs = [int(ch) for ch in str(cfg.qsched).rjust(7, "0")]
        assert sum(qs) == 7
        for q in range(sum(qs[:i]), sum(qs[:i+1])): extra += dma_wq(q)
        if piped(i): stamp(a, cfg, 3 + i, 2)
        a.wait(lg=f"xr{i}")
        for k in range(16):
            x = XF + 16*i + k
            a(f"v_dot2c_f32_bf16 v{61+2*(k&1)}, v{x}, v{x}")
            a(f"v_dot2c_f32_bf16 v{60+2*(k&1)}, s{s_ones}, v{x}")
        if last:
            a.c("LN statistics")
            a(f"""
            v_and_b32 v26, -16, v{v_cs}
            v_mov_b32 v27, 0
            v_and_b32 v24, 31, v{v_lane}
            v_add_f32 v60, v60, v62
            v_add_f32 v61, v61, v63
            v_cmp_eq_u32 vcc, 28, v24
            v_mov_b32 v30, 0x3f80
            v_permlane32_swap_b32 v60, v61
            v_add_f32 v60, v60, v61
            v_mul_f32 v60, {hex(f2u(1.0/448))}, v60
            v_mov_b32 v61, v60
            v_cndmask_b32 v30, 0, v30, vcc
            v_mov_b32 v{WOP0}, s{s_ones}
            v_permlane32_swap_b32 v60, v61           ; v60 = mean, v61 = E[x^2]
            v_fma_f32 v61, -v60, v60, v61
            v_cvt_pk_bf16_f32 v60, v60, v60          ; (m, m)
            v_max_f32 v61, 0, v61
            v_cvt_pk_bf16_f32 v61, v61, v61
            v_and_b32 v61, s{s_hi16}, v61
            v_add_f32 v61, {hex(f2u(1e-5))}, v61
            v_cvt_pk_bf16_f32 v61, v61, v61
            v_and_b32 v61, s{s_hi16}, v61
            v_sqrt_f32 v61, v61
            v_xor_b32 v24, 0x80008000, v60
            v_cvt_pk_bf16_f32 v61, v61, v61
            v_and_b32 v62, s{s_hi16}, v61
            v_bfi_b32 v25, s{s_hi16}, v61, v24
            v_rcp_f32 v62, v62                       ; rstd
            v_cndmask_b32 v{XOP}, 0, v24, s[{s_lo}:{s_lo+1}]
            v_cndmask_b32 v{XOP+1}, 0, v25, s[{s_lo}:{s_lo+1}]
            v_bfi_b32 v28, s{s_hi16}, v61, v60
            """)
        fill = []
        if last and typ == 1:
            fill = [f"v_mov_b32 v63, v62"] + split3(63, 60, 61, 60) + lines(f"""
            v_lshrrev_b32 v61, 16, v61
            v_cndmask_b32 v{WOP1}, 0, v60, s[{s_lo}:{s_lo+1}]
            v_cndmask_b32 v{WOP1+1}, 0, v61, s[{s_lo}:{s_lo+1}]
            v_mov_b32 v{WOP0+1}, s{s_ones}
            """)
        if not piped(i):
            a.wait(vm=f"w{i}", lg="sp")
            if i > 0: run_all(a, erd(i))
            a("s_barrier")
            stamp(a, cfg, 3 + i, 2)
            if i == 0: run_all(a, erd(i))
            run_all(a, rd(i, 0)); run_all(a, rd(i, 1))
        while fill: a(fill.pop(0))
        a.wait(lg=f"e{i}")
        for T, C in ((0, CS0), (1, CS1)):
            c1 = "0" if i == 0 else f"v[{C}:{C+3}]"
            a(f"v_mfma_f32_16x16x32_bf16 v[{C}:{C+3}], v[{SEL}:{SEL+3}], a[{EF+4*T}:{EF+4*T+3}], {c1}")
            if extra: run_all(a, [extra.pop(0)])
        if last and typ == 1:
            a(f"v_mfma_f32_32x32x16_bf16 v[{RSB}:{RSB+15}], v[{WOP1}:{WOP1+3}], v[{WOP0}:{WOP0+3}], 0")
        for s_ in range(4):
            sh = rd(i, s_ + 2) if s_ < 2 else []
            lim = 2 if piped(i + 1) else 4
            if s_ < lim:
                n = -(-len(extra) // (lim - s_))
                xs = extra[:n]; del extra[:n]
                h = (len(xs) + 1) // 2
                sh = sh[:2] + xs[:h] + sh[2:] + xs[h:]
            if piped(i + 1):
                if s_ == 1: sh = sh + [W(vm=f"w{i+1}"), T_("s_barrier")]
                if s_ == 2: sh = x_reads(i + 1) + erd(i + 1)
                if s_ == 3: sh = rd(i + 1, 0) + rd(i + 1, 1)
            elif s_ == 3 and not last:
                sh = sh + [W(vm=f"x{i+1}")] + x_reads(i + 1)
            if last and s_ == 0:
                sh = sh + [(f"ds_write2st64_b32 v{v_cs}, v{CS0}, v{CS1} offset0:0 offset1:2", "csw")]
            if last and s_ == 1:
                sh = sh + [W(lg="csw"), T_("s_barrier"),
                           (f"ds_read_b128 v[{CS0}:{CS0+3}], v26", "csr"), (f"ds_read_b128 v[{CS1}:{CS1+3}], v26 offset:512", "csr")]
            if last and s_ == 3:
                def lo(Wp): return f"v_lshrrev_b32 v{Wp+1}, 16, v61" if typ == 0 else f"v_alignbit_b32 v{Wp+1}, v30, v61, 16"
                for C, Wp in ((CS0, WOP0), (CS1, WOP1)):
                    fill += [f"v_add_f32 v{C}, v{C}, v{C+1}", f"v_add_f32 v{C+2}, v{C+2}, v{C+3}", f"v_add_f32 v{C}, v{C}, v{C+2}"]
                    fill += split3(C, 60, 61, Wp) + [lo(Wp)]
                a.wait(lg="csr")
            a.wait(lg=f"r{i}_{s_}")
            x = XF + 16*i + 4*s_
            first = (i == 0 and s_ == 0)
            for T, A in ((0, ACC0), (1, ACC1)):
                w = WF + 8*s_ + 4*T
                c0 = "0" if first else f"v[{A}:{A+15}]"
                if typ == 0: a(f"v_mfma_f32_32x32x16_bf16 v[{A}:{A+15}], a[{w}:{w+3}], v[{x}:{x+3}], {c0}")
                else:        a(f"v_mfma_f32_32x32x16_bf16 v[{A}:{A+15}], v[{x}:{x+3}], a[{w}:{w+3}], {c0}")
                n = (len(sh) + 1) // 2 if T == 0 else len(sh)
                run_all(a, sh[:n]); sh = sh[n:]
                for _ in range(6):
                    if fill: a(fill.pop(0))
    a.c("fold the mean, scale, pack, store")
    stamp(a, cfg, 10, 2); stamp(a, cfg, 2, 3)
    def r1(A, Wp):
        if typ == 0: a(f"v_mfma_f32_32x32x16_bf16 v[{A}:{A+15}], v[{Wp}:{Wp+3}], v[{XOP}:{XOP+3}], v[{A}:{A+15}]")
        else:        a(f"v_mfma_f32_32x32x16_bf16 v[{A}:{A+15}], v[{XOP}:{XOP+3}], v[{Wp}:{Wp+3}], v[{A}:{A+15}]")
    r1(ACC0, WOP0)
    while fill: a(fill.pop(0))
    a(f"v_and_b32 v27, 124, v{v_l4}")
    a("s_nop 0")
    r1(ACC1, WOP1)
    a(f"buffer_store_dword v28, v27, s[{SWS}:{SWS+3}], s{s_sts} offen sc1", "kvst")
    for T, A in ((0, ACC0), (1, ACC1)):
        for k in range(8):
            if T == 0 and k < cfg.plain_n:
                for e in (0, 1):
                    a(f"v_mul_f32 v{A+2*k+e}, v{A+2*k+e}, v{62 if typ == 0 else RSB+2*k+e}")
            elif typ == 0: a(f"v_pk_mul_f32 v[{A+2*k}:{A+2*k+1}], v[{A+2*k}:{A+2*k+1}], v[62:63] op_sel_hi:[1,0]")
            else:          a(f"v_pk_mul_f32 v[{A+2*k}:{A+2*k+1}], v[{A+2*k}:{A+2*k+1}], v[{RSB+2*k}:{RSB+2*k+1}]")
            a(f"v_cvt_pk_bf16_f32 v{PK+8*T+k}, v{A+2*k}, v{A+2*k+1}")
            if typ == 0 and T == 0 and k == 6:
                a(f"v_cndmask_b32 v{PK+6}, 0, v{PK+6}, s[{s_lo}:{s_lo+1}]")
            if k in (3, 7):
                f = k // 4
                a(f"buffer_store_dwordx4 v[{PK+8*T+4*f}:{PK+8*T+4*f+3}], v{v_l16}, s[{SWS}:{SWS+3}], s{s_kv0+T} offen offset:{1024*f} sc1", "kvst")
```

```python
from g3a import *

KY = RSB
XV = 208; ST4 = 216; STA = 220
X32 = 176; G32 = 192; GT = 40
OFR = [64, 80, 96, 240]
FA = 176; FB = 192; DG = 200; DU = 204; WDF = 248
NM = 240; RS = 241; STW = 242; CFL = 243; SGC = 30; FBA = 241
NEG = 244

def dpp_max(t, full=True):
    L = [f"v_max_u32_dpp v{t}, v{t}, v{t} quad_perm:[1,0,3,2] row_mask:0xf bank_mask:0xf",
         f"v_max_u32_dpp v{t}, v{t}, v{t} quad_perm:[2,3,0,1] row_mask:0xf bank_mask:0xf",
         f"v_max_u32_dpp v{t}, v{t}, v{t} row_half_mirror row_mask:0xf bank_mask:0xf",
         f"v_max_u32_dpp v{t}, v{t}, v{t} row_mirror row_mask:0xf bank_mask:0xf",
         f"v_max_u32_dpp v{t}, v{t}, v{t} row_bcast:15 row_mask:0xa bank_mask:0xf"]
    if full: L.append(f"v_max_u32_dpp v{t}, v{t}, v{t} row_bcast:31 row_mask:0xc bank_mask:0xf")
    return L

def g_code(qt):
    st = ST4 + qt; x = X32 + 4*qt; n = G32 + 4*qt; z = 56; r = 60
    return lines(f"""
    v_and_b32 v{r}, s{s_hi16}, v{st}
    v_lshlrev_b32 v{st}, 16, v{st}
    v_rcp_f32 v{r}, v{r}
    v_lshlrev_b32 v{x}, 16, v{XV+2*qt}
    v_and_b32 v{x+1}, s{s_hi16}, v{XV+2*qt}
    v_mul_f32 v{r+2}, v{st}, v{r}
    v_lshlrev_b32 v{x+2}, 16, v{XV+2*qt+1}
    v_and_b32 v{x+3}, s{s_hi16}, v{XV+2*qt+1}
    v_pk_fma_f32 v[{n}:{n+1}], v[{x}:{x+1}], v[{r}:{r+1}], v[{r+2}:{r+3}] op_sel_hi:[1,0,0] neg_lo:[0,0,1] neg_hi:[0,0,1]
    v_pk_fma_f32 v[{n+2}:{n+3}], v[{x+2}:{x+3}], v[{r}:{r+1}], v[{r+2}:{r+3}] op_sel_hi:[1,0,0] neg_lo:[0,0,1] neg_hi:[0,0,1]
    """) + silu4(n, z, STA)

def silu4(n, z, c):
    return lines(f"""
    v_pk_mul_f32 v[{z}:{z+1}], v[{n}:{n+1}], v[{c}:{c+1}] op_sel_hi:[1,0]
    v_pk_mul_f32 v[{z+2}:{z+3}], v[{n+2}:{n+3}], v[{c}:{c+1}] op_sel_hi:[1,0]
    v_exp_f32 v{z}, v{z}
    v_exp_f32 v{z+1}, v{z+1}
    v_exp_f32 v{z+2}, v{z+2}
    v_exp_f32 v{z+3}, v{z+3}
    v_pk_add_f32 v[{z}:{z+1}], v[{z}:{z+1}], 1.0 op_sel_hi:[1,0]
    v_pk_add_f32 v[{z+2}:{z+3}], v[{z+2}:{z+3}], 1.0 op_sel_hi:[1,0]
    v_rcp_f32 v{z}, v{z}
    v_rcp_f32 v{z+1}, v{z+1}
    v_rcp_f32 v{z+2}, v{z+2}
    v_rcp_f32 v{z+3}, v{z+3}
    v_pk_mul_f32 v[{n}:{n+1}], v[{n}:{n+1}], v[{z}:{z+1}]
    v_pk_mul_f32 v[{n+2}:{n+3}], v[{n+2}:{n+3}], v[{z+2}:{z+3}]
    """)

def kv_load(kt, f):
    return (f"buffer_load_dwordx4 a[{16*kt+4*f}:{16*kt+4*f+3}], v{v_l16 if f < 2 else vVL}, s[{SWS}:{SWS+3}], s{s_kvc} offen offset:{1024*f} sc1",
            f"k{kt}" if f < 2 else f"v{kt}")

def q_phase(a, cfg):
    a.c("Q GEMM")
    EQ = EF
    def rd(k):
        i, s_ = divmod(k, 4)
        return [(f"ds_read_b64_tr_b16 a[{WF+4*(k%8)+2*e}:{WF+4*(k%8)+2*e+1}], v{18 + s_//2} offset:{(s_%2)*WVSZ + i*1024 + e*256}", f"rq{k}") for e in (0, 1)]
    def erd(i):
        return [(f"ds_read_b64_tr_b16 a[{EQ+4*i+2*e}:{EQ+4*i+2*e+1}], v20 offset:{L_WQ + i*1024 + e*256}", f"eq{i}") for e in (0, 1)]
    def emm(i):
        c1 = "0" if i == 0 else f"v[{CSQ}:{CSQ+3}]"
        return f"v_mfma_f32_16x16x32_bf16 v[{CSQ}:{CSQ+3}], v[{SEL}:{SEL+3}], a[{EQ+4*i}:{EQ+4*i+3}], {c1}"
    a.wait(vm=("q6", "sigld"))
    run_all(a, erd(0) + erd(1))
    a(f"""
L_sigA_chk:
    v_cmp_eq_u32 vcc, 0, v29
    s_and_b32 s{s_t0}, vcc_lo, 0xff
    s_cbranch_scc1 L_sigA
L_sigA_ok:
    """)
    a("s_barrier")
    stamp(a, cfg, 4, 3)
    LA = cfg.qla
    for k in range(LA): run_all(a, rd(k))
    k0, k1, fa, fd, tt = KY, KY + 1, KY + 2, KY + 3, KY + 4
    pre = lines(f"""
    v_ashrrev_i32 v{k0}, 31, v{ACC0+12}
    s_lshl2_add_u32 s{s_t0}, s{s_tb}, s{s_w}
    v_or_b32 v{k0}, 0x80000000, v{k0}
    s_lshl_b32 s{s_t0}, s{s_t0}, 5
    v_xor_b32 v{k0}, v{k0}, v{ACC0+12}
    s_sub_u32 s{s_t0}, {2047 + 32}, s{s_t0}
    v_and_b32 v{k0}, 0xfffff800, v{k0}
    v_sub_u32 v{tt}, s{s_t0}, v{v_lane}
    v_or_b32 v{k0}, v{k0}, v{tt}
    v_max_u32 v{k0}, 1, v{k0}
    v_cndmask_b32 v{k0}, v{k0}, 0, s[{s_lo}:{s_lo+1}]
    """)
    chain = [f"v_mov_b32 v{k1}, v{k0}"] + dpp_max(k1, False) + lines(f"""
    v_readlane_b32 s{s_k1}, v{k1}, 63
    v_cmp_eq_u32 vcc, s{s_k1}, v{k0}
    v_cndmask_b32 v{k1}, v{k0}, 0, vcc
    """) + dpp_max(k1, False) + [f"v_readlane_b32 s{s_k2}, v{k1}, 63"]
    ind = lines(f"""
    v_mov_b32 v{fd}, s{s_xcc}
    s_mul_i32 s{s_t0}, s{s_p}, 12
    s_lshl_b32 s{s_t1}, s{s_p}, 1
    s_sub_u32 s{s_t1}, 3, s{s_t1}
    v_add_u32 v{fa}, s{s_t0}, v{v_l4}
    v_cmp_gt_u32 s[{s_sv}:{s_sv+1}], s{s_t1}, v{v_lane}
    v_mov_b32 v{tt}, {OOB}
    v_add_u32 v{vQ0}, {L_WV}, v{v_l16}
    v_cndmask_b32 v{fa}, v{tt}, v{fa}, s[{s_sv}:{s_sv+1}]
    v_add_u32 v{vQ1}, {L_WV + 2*WVSZ}, v{v_l16}
    """)
    unp = [f"v_accvgpr_read_b32 v{f}, a{n}" for f, n in PARKED if f not in vR]
    unp_late = [f"v_accvgpr_read_b32 v{f}, a{n}" for f, n in PARKED if f in vR]
    for l in pre: a(l)
    fill = merge(chain, ind + unp[:5], 1) + [f"v_writelane_b32 v{fd}, s{s_k1}, 1", unp[5], unp[6], f"v_writelane_b32 v{fd}, s{s_k2}, 2"]
    nkey = len(fill)
    fill += unp[7:]
    cs = lines(f"""
    v_add_f32 v{CSQ}, v{CSQ}, v{CSQ+1}
    v_add_f32 v{CSQ+2}, v{CSQ+2}, v{CSQ+3}
    v_add_f32 v{CSQ}, v{CSQ}, v{CSQ+2}
    """) + split3(CSQ, 60, 61, WOP1) + [f"v_lshrrev_b32 v{WOP1+1}, 16, v61", f"v_mul_f32 v62, {hex(f2u(QSCALE))}, v62"]
    def flag():
        stamp(a, cfg, 5, 3)
        a.wait(vm="kvst")
        a(f"buffer_store_dword v{fd}, v{fa}, s[{SWS}:{SWS+3}], s{s_fr} offen", "flag")
        stamp(a, cfg, 3); stamp(a, cfg, 12, 2)
        if cfg.prof == 3: a("s_waitcnt lgkmcnt(0)")
        stamp(a, cfg, 6, 3)
    for k in range(28):
        sh = rd(k + LA) if k + LA < 28 else []
        w = WF + 4*(k % 8); x = XF + 4*k
        c0 = "0" if k == 0 else f"v[{ACCQ}:{ACCQ+15}]"
        if k < 7:
            a.wait(lg=(f"rq{k}", f"eq{k}"))
            a(emm(k))
            if k < 5: run_all(a, erd(k + 2))
        elif k % 2 == 1 or k == 27:
            a.wait(lg=(f"rq{k}", f"rq{k+1}"))
        a(f"v_mfma_f32_32x32x16_bf16 v[{ACCQ}:{ACCQ+15}], a[{w}:{w+3}], v[{x}:{x+3}], {c0}")
        run_all(a, sh)
        nf = 3 if sh else 5
        if k == 8:
            a(f"ds_write_b32 v{v_cs}, v{CSQ} offset:1024", "csw")
            a(f"v_and_b32 v{v_cs}, -16, v{v_cs}"); nf = 1
        if k == 12:
            a.wait(lg="csw"); a("s_barrier")
            a(f"ds_read_b128 v[{CSQ}:{CSQ+3}], v{v_cs} offset:1024", "csr"); nf = 1
        if k == 20:
            while fill: a(fill.pop(0))
            a.wait(lg="csr")
            fill = cs
        if k == 28 - LA:
            fill += unp_late + [f"v_mov_b32 v{NEG+i}, -1" for i in range(4)] + [f"v_mov_b32 v{FB+i}, s{s_ones}" for i in range(8)]
        for _ in range(nf):
            if fill: a(fill.pop(0)); nkey -= 1
        if k == cfg.flag_at:
            while nkey > 0: a(fill.pop(0)); nkey -= 1
            flag()
    nrest = min(len(fill), 10)
    while len(fill) > nrest: a(fill.pop(0))
    assert not any("v62" in l for l in fill)
    a(f"v_mfma_f32_32x32x16_bf16 v[{ACCQ}:{ACCQ+15}], v[{WOP1}:{WOP1+3}], v[{XOP}:{XOP+3}], v[{ACCQ}:{ACCQ+15}]")
    stamp(a, cfg, 7, 3)
    if cfg.flag_at == 28: flag()
    for qt in range(4):
        if qt: a(f"s_add_u32 s{s_t3}, s{s_outb}, {32*896*qt}")
        a(f"buffer_load_dwordx2 v[{XV+2*qt}:{XV+2*qt+1}], v{v_out}, s[{SX}:{SX+3}], s{s_t3 if qt else s_outb} offen", "xv")
    while fill: a(fill.pop(0))
    a(f"""
    s_mov_b32 s{s_cnt}, 0
    s_mov_b32 s{s_fail}, 0
    s_lshl_b32 s{s_t2}, s{s_ro}, 6
    s_add_u32 s{s_sts}, s{s_t2}, s{s_st}
    """)
    for k in range(8):
        a(f"v_pk_mul_f32 v[{ACCQ+2*k}:{ACCQ+2*k+1}], v[{ACCQ+2*k}:{ACCQ+2*k+1}], v[62:63] op_sel_hi:[1,0]")
        a(f"v_cvt_pk_bf16_f32 v{PK+8+k}, v{ACCQ+2*k}, v{ACCQ+2*k+1}")
        if k >= 6: a(f"v_cndmask_b32 v{PK+8+k}, 0, v{PK+8+k}, s[{s_lo}:{s_lo+1}]")
        if k in (3, 7):
            a(f"ds_write_b128 v{vLW}, v[{PK+8+k-3}:{PK+8+k}] offset:{L_QX + (k//4)*1024}", "qw")
    if cfg.flag_at == 29: flag()
    poll = f"buffer_load_dwordx4 v[{ACC1}:{ACC1+3}], v{v_l16}, s[{SWS}:{SWS+3}], s{s_fo} offen sc1"
    if cfg.poll_at == 0: a(poll, "poll")
    a.wait(lg="qw")
    a("s_barrier")
    stamp(a, cfg, 8, 3)
    for qt in range(4):
        for f in range(2):
            a(f"ds_read_b128 v[{QF+8*qt+4*f}:{QF+8*qt+4*f+3}], v{vQ0 + qt//2} offset:{(qt%2)*WVSZ + L_QX + f*1024}", f"qf{qt}")
    if cfg.poll_at == 1: a(poll, "poll")
    stamp(a, cfg, 4); stamp(a, cfg, 9, 3)
    a.wait(vm="poll")
    a.label("L_fchk")
    if cfg.force_slow_kv: a("s_branch L_fretry")
    a(f"""
    v_min_u32 v{tt}, v{ACC1+1}, v{ACC1+2}
    v_cmp_ne_u32 vcc, s{s_xcc}, v{ACC1}
    v_cmp_ne_u32 s[{s_sv}:{s_sv+1}], s{s_xcc}, v{ACC1+3}
    s_or_b64 vcc, vcc, s[{s_sv}:{s_sv+1}]
    v_cmp_eq_u32 s[{s_sv}:{s_sv+1}], 0, v{tt}
    s_or_b64 vcc, vcc, s[{s_sv}:{s_sv+1}]
    s_cbranch_scc1 L_fretry
L_fok:
    """)
    if cfg.prof in (1, 3): a("s_waitcnt lgkmcnt(0)")
    stamp(a, cfg, 5); stamp(a, cfg, 10, 3)
    for kt in range(2):
        run_all(a, [kv_load(kt, f) for f in range(4)] + [T(f"s_add_u32 s{s_kvc}, s{s_kvc}, 4096")])
    chain = [f"v_mov_b32 v{k1}, v{ACC1+1}"] + dpp_max(k1) + lines(f"""
    v_readlane_b32 s{s_k1}, v{k1}, 63
    v_cmp_eq_u32 vcc, s{s_k1}, v{ACC1+1}
    v_cndmask_b32 v{k1}, v{ACC1+1}, v{ACC1+2}, vcc
    """) + dpp_max(k1) + [f"v_readlane_b32 s{s_k2}, v{k1}, 63"]
    rest = lines(f"""
    s_mov_b32 s{s_pad}, 0x33333333
    s_mov_b32 s{s_pad+1}, s{s_pad}
    s_movk_i32 s{s_t3}, 896
    s_mul_i32 s{s_md}, s{s_x}, 112
    s_or_b32 s{s_lead}, s{s_h}, s{s_w}
    v_and_b32 v{FBA}, 48, v{v_lane}
    """)
    rest = [f"v_and_b32 v{STA}, 60, v{v_l4}"] + rest + [(f"buffer_load_dword v{ST4+qt}, v{STA}, s[{SWS}:{SWS+3}], s{s_sts} offen offset:{128*qt} sc1", "xv") for qt in range(4)]
    for l in merge(chain, rest, 1): a(*l) if isinstance(l, tuple) else a(l)
    a(f"""
    s_andn2_b32 s{s_ia}, 2047, s{s_k1}
    s_andn2_b32 s{s_ib}, 2047, s{s_k2}
    v_mov_b32 v{k0}, s{s_ia}
    v_mov_b32 v{k1}, s{s_ib}
    s_mov_b32 vcc_lo, 0xaaaaaaaa
    s_mov_b32 vcc_hi, vcc_lo
    s_lshr_b32 s{s_t0}, s{s_ia}, 4
    s_and_b32 s{s_t0}, s{s_t0}, 0x79
    v_cndmask_b32 v{k0}, v{k0}, v{k1}, vcc
    s_cmp_eq_u32 s{s_t0}, s{s_ro}
    s_cselect_b32 s{s_sp}, 1, 0
    v_mad_u32_u24 v{FBA}, v{k0}, s{s_t3}, v{FBA}
    v_lshlrev_b32 v{STW}, 2, v{k0}
    s_lshr_b32 s{s_t0}, s{s_ib}, 4
    s_and_b32 s{s_t0}, s{s_t0}, 0x79
    s_cmp_eq_u32 s{s_t0}, s{s_ro}
    s_cselect_b32 s{s_t0}, 2, 0
    s_or_b32 s{s_sp}, s{s_sp}, s{s_t0}
    """)
    a(f"s_mov_b64 exec, s[{s_pad}:{s_pad+1}]")
    for k in range(2):
        a(f"buffer_load_dwordx4 v[{FB+4*k}:{FB+4*k+3}], v{FBA}, s[{SX}:{SX+3}], s{s_md} offen offset:{64*k}", "fb")
    a("s_mov_b64 exec, -1")
    a(f"buffer_load_dword v{STW}, v{STW}, s[{SWS}:{SWS+3}], s{s_st} offen sc1", "fb")
    for kt in range(2, cfg.kv_pre):
        run_all(a, [kv_load(kt, f) for f in range(4)] + [T(f"s_add_u32 s{s_kvc}, s{s_kvc}, 4096")])
    stamp(a, cfg, 11, 3)

def handoff_slow(a, cfg):
    fa, fd, tt = KY + 2, KY + 3, KY + 4
    a(f"""
L_sigA:
    s_mov_b32 s{s_cnt}, 0
L_sigA_l:
    buffer_load_dword v29, v{v_l4}, s[{SDB}:{SDB+3}], 0 offen sc1
    s_add_u32 s{s_cnt}, s{s_cnt}, 1
    s_waitcnt vmcnt(0)
    s_cmp_gt_u32 s{s_cnt}, {cfg.spin}
    s_cbranch_scc1 L_sigA_ok
    v_cmp_eq_u32 vcc, 0, v29
    s_and_b32 s{s_t0}, vcc_lo, 0xff
    s_cbranch_scc1 L_sigA_l
    s_branch L_sigA_ok
L_fretry:
    s_add_u32 s{s_cnt}, s{s_cnt}, 1
    s_cmp_lt_u32 s{s_cnt}, {cfg.fto}
    s_cbranch_scc1 L_fagain
    s_cmp_gt_u32 s{s_cnt}, {cfg.spin}
    s_cbranch_scc1 L_fok
    s_cmp_eq_u32 s{s_cnt}, {cfg.fto}
    s_cbranch_scc0 L_gpoll
    buffer_store_dword v{fd}, v{fa}, s[{SWS}:{SWS+3}], s{s_fr} offen offset:1024 sc1
L_gpoll:
    buffer_load_dwordx4 v[{ACC1}:{ACC1+3}], v{v_l16}, s[{SWS}:{SWS+3}], s{s_fo} offen offset:1024 sc1
    s_waitcnt vmcnt(0)
    v_min3_u32 v{tt}, v{ACC1}, v{ACC1+1}, v{ACC1+2}
    v_min_u32 v{tt}, v{tt}, v{ACC1+3}
    v_cmp_eq_u32 vcc, 0, v{tt}
    s_cbranch_vccz L_fok
L_fagain:
    buffer_load_dwordx4 v[{ACC1}:{ACC1+3}], v{v_l16}, s[{SWS}:{SWS+3}], s{s_fo} offen sc1
    s_waitcnt vmcnt(0)
    s_branch L_fchk
    """)

def tile_of(t):
    return (t // 3, t % 3) if t < 48 else (t - 48, 3)
def qk(t):
    kt, qt = tile_of(t); S = S_[t % 2]; k = 16*kt; q = QF + 8*qt
    return [f"v_mfma_f32_32x32x16_bf16 v[{S}:{S+15}], a[{k}:{k+3}], v[{q}:{q+3}], 0",
            f"v_mfma_f32_32x32x16_bf16 v[{S}:{S+15}], a[{k+4}:{k+7}], v[{q+4}:{q+7}], v[{S}:{S+15}]"]
def pv(t):
    kt, qt = tile_of(t); P = P_[t % 2]; k = 16*kt + 8; o = OA + 16*qt
    c = "0" if kt == 0 else f"v[{o}:{o+15}]"
    return [f"v_mfma_f32_32x32x16_bf16 v[{o}:{o+15}], a[{k}:{k+3}], v[{P}:{P+3}], {c}",
            f"v_mfma_f32_32x32x16_bf16 v[{o}:{o+15}], a[{k+4}:{k+7}], v[{P+4}:{P+7}], v[{o}:{o+15}]"]

def o_write(src, off, tag):
    return [T(f"ds_write_b128 v{vLW}, v[{src+4*g}:{src+4*g+3}] offset:{off + 1024*(g-1)}", tag) for g in (1, 2, 3)]
def o_read(dst, off, tag):
    return [T(f"ds_read_b128 v[{dst+4*g}:{dst+4*g+3}], v{vR[g-1]} offset:{off}", tag) for g in (2, 1, 3)]
def sum4(d):
    return lines(f"""
    v_pk_add_f32 v[{d+2}:{d+3}], v[{d+2}:{d+3}], v[{d+10}:{d+11}]
    v_pk_add_f32 v[{d+6}:{d+7}], v[{d+6}:{d+7}], v[{d+14}:{d+15}]
    v_pk_add_f32 v[{d}:{d+1}], v[{d}:{d+1}], v[{d+8}:{d+9}]
    v_pk_add_f32 v[{d+2}:{d+3}], v[{d+2}:{d+3}], v[{d+6}:{d+7}]
    v_pk_add_f32 v[{d+4}:{d+5}], v[{d+4}:{d+5}], v[{d+12}:{d+13}]
    v_pk_add_f32 v[{d}:{d+1}], v[{d}:{d+1}], v[{d+4}:{d+5}]
    """)
def o_norm(d, out):
    s4 = sum4(d)
    return s4[:4] + lines(f"""
    v_rcp_f32 v{d+8}, v{d+3}
    {s4[4]}
    v_subrev_u32 v{d+6}, {hex(L_LO)}, v{d+3}
    v_mov_b32 v{d+10}, v{d+8}
    {s4[5]}
    v_cndmask_b32 v{d+3}, 0, v{d+3}, s[{s_lo}:{s_lo+1}]
    v_permlane32_swap_b32 v{d+10}, v{d+8}
    v_cmp_le_u32 vcc, {hex(L_RNG)}, v{d+6}
    v_pk_mul_f32 v[{d}:{d+1}], v[{d}:{d+1}], v[{d+8}:{d+9}] op_sel_hi:[1,0]
    v_pk_mul_f32 v[{d+2}:{d+3}], v[{d+2}:{d+3}], v[{d+8}:{d+9}] op_sel_hi:[1,0]
    v_cvt_pk_bf16_f32 v{out}, v{d}, v{d+1}
    v_cvt_pk_bf16_f32 v{out+1}, v{d+2}, v{d+3}
    v_min_u32 v{out}, -2, v{out}
    v_min_u32 v{out+1}, -2, v{out+1}
    """)

ZR = FA
def z_reduce():
    g, u = ZR, ZR + 4
    return lines(f"""
    v_permlane32_swap_b32 v{g}, v{g+2}
    v_permlane32_swap_b32 v{g+1}, v{g+3}
    v_permlane32_swap_b32 v{u}, v{u+2}
    v_permlane32_swap_b32 v{u+1}, v{u+3}
    v_add_f32 v{g}, v{g}, v{g+2}
    v_add_f32 v{g+1}, v{g+1}, v{g+3}
    v_add_f32 v{u}, v{u}, v{u+2}
    v_add_f32 v{u+1}, v{u+1}, v{u+3}
    v_permlane16_swap_b32 v{g}, v{g+1}
    v_add_f32 v{g}, v{g}, v{g+1}
    v_permlane16_swap_b32 v{u}, v{u+1}
    v_add_f32 v{u}, v{u}, v{u+1}
    v_cmp_u_f32 vcc, v{g}, v{u}
    """)

def o_load(qt, tag):
    L = [T(f"s_add_u32 s{s_t2}, s{s_oc}, {32768*qt}")]
    for hh in range(4):
        r = OFR[qt] + 4*hh
        L.append((f"buffer_load_dwordx4 v[{r}:{r+3}], v{v_l16}, s[{SWS}:{SWS+3}], s{s_t2} offen offset:{1024*hh} sc1", tag))
    return L

def attention(a, cfg):
    NS = 64
    sh = [[] for _ in range(NS * 4)]
    xm = [[] for _ in range(NS * 4)]
    xv = [[] for _ in range(NS * 4)]
    vm = [0] * (NS * 4 + 2)
    def put(g, items):
        for it in items:
            heavy = getattr(it, "heavy", False)
            while sh[g] or (heavy and (vm[g-1] or vm[g+1])): g += 1
            sh[g].append(it); vm[g] = heavy; g += 1
        return g
    def V(text, tag=None):
        f = T(text, tag); f.heavy = True; return f
    sh[1*4 + 1].append(W(vm="v0"))
    for kt in range(1, 16):
        sh[(3*kt - 2)*4 + 3].append(W(vm=(f"k{kt}", f"v{kt}")))
    nt = " nt" if cfg.nt else ""
    g = cfg.slow_at
    for srd, l, o0, o1, va in ((SG, L_G, s_gu0, s_gu1, vGU), (SU, L_U, s_gu0, s_gu1, vGU), (SWD, L_WD, s_wd0, s_wd1, vWD)):
        g = put(g, [T(f"s_add_u32 m0, s{s_lw}, {l}"), V(f"buffer_load_dwordx4 v{va}, s[{srd}:{srd+3}], s{o0} offen{nt} lds", "gu")]) + cfg.slow_gap
        g = put(g, [V(f"buffer_load_dwordx4 v{va}, s[{srd}:{srd+3}], s{o1} offen offset:1024{nt} lds", "gu")]) + cfg.slow_gap
    gsl = put(g - cfg.slow_gap, [T(f"buffer_load_dword v{vWP}, v{vWP}, s[{SWO}:{SWO+3}], 0 offen", "gu")])
    assert gsl <= cfg.f1_at and gsl <= cfg.wo_at
    ks = [int(ch) for ch in str(cfg.kvs).ljust(16, "0")]
    assert sum(ks) + cfg.kv_pre == 16
    nxt = cfg.kv_pre; g = 0
    st = f"buffer_store_dwordx4 v[{NEG}:{NEG+3}], "
    for step in range(16):
        g = max(g, step * 12)
        for _ in range(ks[step]):
            g = put(g, [V(*kv_load(nxt, f)) for f in range(4)] + [T(f"s_add_u32 s{s_kvc}, s{s_kvc}, 4096")])
            assert g <= (3*nxt - 2)*4 + 3 - cfg.kv_lead, (nxt, g)
            nxt += 1
        if step == cfg.clr_step:
            g = put(g, [V(st + f"v{v_l16}, s[{SWS}:{SWS+3}], s{s_ocl} offen sc1", "clr"), T(f"s_add_u32 s{s_ocl}, s{s_ocl}, 16384"),
                        V(st + f"v{v_l16}, s[{SWS}:{SWS+3}], s{s_ocl} offen sc1", "clr"),
                        T(st + f"v{vZC}, s[{SWS}:{SWS+3}], 0 offen sc1", "clr")])
            gc = g
    gk = g
    g = put(47*4 + 2, o_write(OA, L_R, "ow"))
    g = put(max(g, 48*4 + 2), o_write(OA + 16, L_R + 4096, "ow"))
    g = put(max(g, 49*4 + 2), o_write(OA + 32, L_R + 8192, "ow"))
    g = put(g + 1, [W(lg="ow"), T("s_barrier")])
    PO = 32
    g = put(g, o_read(OA, L_R, "or0") + o_read(OA + 16, L_R + 4096, "or1"))
    g2 = put(g, o_read(OA + 32, L_R + 8192, "or2")[:1] + [W(lg="or1")])
    frc = lambda qt: ["s_mov_b64 vcc, -1"] if cfg.force_slow_sm >> qt & 1 else []
    xv[g2-1] += o_norm(OA, PO) + frc(0) + [f"s_mov_b32 s{s_t1}, vcc_hi"] + o_norm(OA + 16, PO + 2) + frc(1) + lines(f"""
    s_or_b32 s{s_t1}, s{s_t1}, vcc_hi
    s_cselect_b32 s{s_t0}, {OOB}, s{s_ob}
    v_permlane32_swap_b32 v{PO}, v{PO+2}
    v_permlane32_swap_b32 v{PO+1}, v{PO+3}
    s_cselect_b32 s{s_fail}, 3, 0
    """)
    g = put(g2, [T(f"buffer_store_dwordx4 v[{PO}:{PO+3}], v{vO2}, s[{SWS}:{SWS+3}], s{s_t0} offen sc1", "ost")] + o_read(OA + 32, L_R + 8192, "or2")[1:]
            + [T(f"s_add_u32 s{s_t1}, s{s_ob}, 65536"), W(lg="or2")])
    xv[g-1] += o_norm(OA + 32, 36) + frc(2) + lines(f"""
    s_cmp_lg_u32 vcc_hi, 0
    s_cselect_b32 s{s_t0}, {OOB}, s{s_t1}
    v_permlane32_swap_b32 v36, v38
    v_permlane32_swap_b32 v37, v39
    s_cselect_b32 s{s_t1}, 4, 0
    """)
    gp = g = put(g, [T(f"buffer_store_dwordx4 v[36:39], v{vO1}, s[{SWS}:{SWS+3}], s{s_t0} offen sc1", "ost"), T(f"s_or_b32 s{s_fail}, s{s_fail}, s{s_t1}")])
    assert gc <= cfg.cf_at
    gcf = put(cfg.cf_at, [W(vm="clr"), T(f"buffer_store_dword v{NEG}, v{v_l0}, s[{SWS}:{SWS+3}], s{s_cf} offen sc1", "cf")])
    g = put(cfg.f1_at, [W(vm=("fb", "gu")), T("s_barrier")])
    fa = [T(f"ds_read_b64_tr_b16 v[{FA+8*m+4*k+2*e}:{FA+8*m+4*k+2*e+1}], v{vGT} offset:{2*k*WVSZ + (L_G, L_U)[m] + 512*e}", "fa")
          for k in (0, 1) for m in (0, 1) for e in (0, 1)]
    for i in range(0, 8, 2):
        g = put(g, fa[i:i+1]); sh[g-1].append(fa[i+1])
    g = put(g + 1, [W(lg="fa")]) - 1
    fd = [T(f"ds_read_b64_tr_b16 v[{WDF+4*k+2*e}:{WDF+4*k+2*e+1}], v{vGT} offset:{2*k*WVSZ + L_WD + 512*e}", "fd") for k in (0, 1) for e in (0, 1)]
    xv[g] += lines(f"""
    v_lshlrev_b32 v{NM}, 16, v{STW}
    v_and_b32 v{RS}, s{s_hi16}, v{STW}
    v_readlane_b32 s{s_sa}, v{STW}, 0
    v_rcp_f32 v{RS}, v{RS}
    v_readlane_b32 s{s_sb}, v{STW}, 1
    v_xor_b32 v{NM}, 0x80000000, v{NM}
    """)
    for k in (0, 1):
        for m, D in ((0, DG), (1, DU)):
            c0 = "0" if k == 0 else f"v[{D}:{D+3}]"
            xm[g] = [f"v_mfma_f32_16x16x32_bf16 v[{D}:{D+3}], v[{FA+8*m+4*k}:{FA+8*m+4*k+3}], v[{FB+4*k}:{FB+4*k+3}], {c0}", fd.pop(0)]; g += 1
    xv[g] += [f"v_fmac_f32_dpp v{DG+i}, v{DG+i}, v{NM} quad_perm:[2,2,2,2] row_mask:0xf bank_mask:0xf" for i in range(8)]
    g = put(max(g + 1, gcf), [T(f"buffer_store_dwordx4 v[{DG}:{DG+3}], v{vZS}, s[{SWS}:{SWS+3}], 0 offen sc1", "zst"),
                    T(f"buffer_store_dwordx4 v[{DU}:{DU+3}], v{vZS}, s[{SWS}:{SWS+3}], 0 offen offset:128 sc1", "zst")])
    g1 = g
    HF = FB
    g = put(cfg.cl_at, [T(f"buffer_load_dword v{CFL}, v{v_l4}, s[{SWS}:{SWS+3}], s{s_cr} offen sc1", "cl")])
    g = put(g + cfg.cl_lat, [W(vm="cl")])
    assert g < 200
    xv[g-1] += ["L_cchk:", f"v_cmp_eq_u32 vcc, 0, v{CFL}", "s_cbranch_vccnz L_crt", "L_cok:", f"s_cmp_eq_u32 s{s_lead}, 0", "s_cbranch_scc1 L_sgC", "L_sgC_ret:"]
    assert cfg.f2_at - cfg.z_lat >= max(g, g1)
    g = put(cfg.f2_at - cfg.z_lat, [V(f"buffer_load_dwordx4 v[{ZR+4*m}:{ZR+4*m+3}], v{vZL}, s[{SWS}:{SWS+3}], s{s_zin} offen offset:{128*m} sc1", "zl") for m in (0, 1)])
    g = put(max(g, cfg.f2_at), [W(vm="zl")])
    gq, uq = ZR, ZR + 4
    xv[g-1] += z_reduce() + ["s_cbranch_vccnz L_zrt", "L_zok:"] + lines(f"""
    v_add_f32_dpp v{gq}, v{gq}, v{gq} row_ror:8 row_mask:0xf bank_mask:0xf
    v_add_f32_dpp v{uq}, v{uq}, v{uq} row_ror:8 row_mask:0xf bank_mask:0xf
    v_mul_f32 v{gq}, v{gq}, v{RS}
    v_mul_f32 v{uq}, v{uq}, v{RS}
    v_mul_f32 v{gq+1}, {hex(f2u(-LOG2E))}, v{gq}
    v_exp_f32 v{gq+1}, v{gq+1}
    v_mul_f32 v{gq}, v{gq}, v{uq}
    v_add_f32 v{gq+1}, 1.0, v{gq+1}
    v_rcp_f32 v{gq+1}, v{gq+1}
    """)
    xv[g] += [f"v_mul_f32 v{gq}, v{gq}, v{gq+1}", f"v_cvt_pk_bf16_f32 v{gq}, v{gq}, v{gq}"]
    g = put(g + 1, [T(f"ds_write_b16 v{vHW}, v{gq}", "fh")])
    g = put(g + 1, [W(lg="fh"), T("s_barrier")] + [T(f"ds_read_b128 v[{HF+4*k}:{HF+4*k+3}], v{vH1} offset:{64*k}", "fh") for k in (0, 1)])
    g = put(g + 1, [W(lg="fh")])
    xm[g] = [f"v_mfma_f32_16x16x32_bf16 v[{DG}:{DG+3}], v[{WDF}:{WDF+3}], v[{HF}:{HF+3}], 0"]; g += 1
    xm[g] = [f"v_mfma_f32_16x16x32_bf16 v[{DG}:{DG+3}], v[{WDF+4}:{WDF+7}], v[{HF+4}:{HF+7}], v[{DG}:{DG+3}]"]; g += 2
    g = put(g, [T(f"buffer_store_dwordx4 v[{DG}:{DG+3}], v{vY}, s[{SWS}:{SWS+3}], 0 offen sc1", "yst")])
    gf = g
    L = []
    for e in range(14):
        if e % 4 == 0:
            if e: L.append(T(f"s_add_u32 s{s_wo}, s{s_wo}, {32*896}"))
            L.append(T(f"s_add_u32 m0, s{s_wol}, {1024*e}"))
        L.append(V(f"buffer_load_dwordx4 v{vWO[e%4]}, s[{SWO}:{SWO+3}], s{s_wo} offen offset:{1024*(e%4)} lds", "wo"))
    gw = put(cfg.wo_at, L)
    def dump():
        for r in range(0, 256, 48):
            print("%3d " % r + " ".join("".join((getattr(sh[g][0], "ch", "F") if sh[g] else "_") for g in range(q, min(q + 12, 256))) for q in range(r, min(r + 48, 256), 12)), file=sys.stderr)
    assert gf <= 254
    gsg = put(cfg.sgc_at, [T(f"buffer_load_dword v{SGC}, v{v_l4}, s[{SDB}:{SDB+3}], 0 offen offset:128 sc1", "sgc")])
    assert cfg.sgc_at > cfg.f1_at
    g = put(max(gsg + 14, gp), [W(vm="sgc")])
    xv[g-1] += ["L_schk:", f"v_cmp_eq_u32 vcc, 0, v{SGC}", f"s_and_b32 s{s_t0}, vcc_lo, 0xffff", "s_cbranch_scc1 L_srt", "L_sok:"]
    ol = o_load(0, "ol0") + o_load(1, "ol1") + o_load(2, "ol2")
    put(max(g, cfg.ol_at), [it if callable(it) else V(*it) for it in ol[:cfg.ol_in]])
    put(2, [T(f"s_mov_b32 s{s_qt}, 3"), T(f"s_mov_b32 s{s_chk}, 8")])
    g = put(max(gw + cfg.wo_lat, 53*4), [W(vm="wo")])
    tr = [T(f"ds_read_b64_tr_b16 a[{16*hh+4*k+2*e}:{16*hh+4*k+2*e+1}], v{vT[k ^ (2*((hh+e)&1))]} offset:{(28*hh + 4*e)*128}", "wt")
          for hh in range(4) for k in range(4) for e in (0, 1)]
    assert g >= 53*4
    free = [q for q in range(g, NS*4 - 2) if not sh[q]]
    n = min(len(tr), cfg.tr_n)
    dbl = max(0, n - len(free))
    k = 0
    for q in free:
        for _ in range(2 if dbl > 0 else 1):
            if k < n: sh[q].append(tr[k]); k += 1
        dbl -= 1
    a.tr_rest = tr[k:]
    if cfg.verbose: dump()
    print("kv ends", gk, "stage1 ends", g1, "ffn ends", gf, "publish ends", gp, "wo ends", gw, "tr left", len(a.tr_rest), file=sys.stderr)
    a.wait(vm="k0", lg="qf3")
    stamp(a, cfg, 6); stamp(a, cfg, 12, 3); stamp(a, cfg, 2, 4)
    for m in qk(0): a(m)
    for t in range(NS):
        a.c(f"slot {t}")
        if t == 0: mf = qk(1) + [None, None]
        elif t < NS - 1: mf = qk(t + 1) + pv(t - 1)
        else: mf = pv(t - 1) + [None, pv(t)[0]]
        S = S_[t % 2]; P = P_[t % 2]
        for q in range(4):
            g = 4*t + q
            if mf[q]: a(mf[q])
            for it in sh[g]: it(a)
            b = S + 4*q
            for k in range(3): a(f"v_exp_f32 v{b+k}, v{b+k}")
            if xm[g]:
                a(xm[g][0])
                for it in xm[g][1:]: it(a)
            a(f"v_exp_f32 v{b+3}, v{b+3}")
            a(f"v_cvt_pk_bf16_f32 v{P+2*q}, v{b}, v{b+1}")
            a(f"v_cvt_pk_bf16_f32 v{P+2*q+1}, v{b+2}, v{b+3}")
            for l in xv[g]: a(l)
        if t == 47: stamp(a, cfg, 7)
        if t + 1 in (6, 12, 18, 24, 30, 36, 42, 48, 56, 64): stamp(a, cfg, 3 + (6, 12, 18, 24, 30, 36, 42, 48, 56, 64).index(t + 1), 4)
    a(pv(NS - 1)[1])

def attention_slow(a, cfg):
    a(f"""
L_crt:
    s_add_u32 s{s_cnt}, s{s_cnt}, 1
    s_cmp_gt_u32 s{s_cnt}, {cfg.spin}
    s_cbranch_scc1 L_cok
    buffer_load_dword v{CFL}, v{v_l4}, s[{SWS}:{SWS+3}], s{s_cr} offen sc1
    s_waitcnt vmcnt(0)
    s_branch L_cchk
L_srt:
    s_add_u32 s{s_cnt}, s{s_cnt}, 1
    s_cmp_gt_u32 s{s_cnt}, {cfg.spin}
    s_cbranch_scc1 L_sok
    buffer_load_dword v{SGC}, v{v_l4}, s[{SDB}:{SDB+3}], 0 offen offset:128 sc1
    s_waitcnt vmcnt(0)
    s_branch L_schk
L_sgC:
    s_lshl_b32 s{s_t0}, s{s_tb}, 2
    buffer_store_dword v{NEG}, v{v_l0}, s[{SDB}:{SDB+3}], s{s_t0} offen offset:128 sc1
    s_branch L_sgC_ret
L_zrt:
    s_add_u32 s{s_cnt}, s{s_cnt}, 1
    buffer_load_dwordx4 v[{ZR}:{ZR+3}], v{vZL}, s[{SWS}:{SWS+3}], s{s_zin} offen sc1
    buffer_load_dwordx4 v[{ZR+4}:{ZR+7}], v{vZL}, s[{SWS}:{SWS+3}], s{s_zin} offen offset:128 sc1
    s_waitcnt vmcnt(0)
    v_max3_u32 v{DG}, v{ZR}, v{ZR+1}, v{ZR+2}
    v_max3_u32 v{DG}, v{DG}, v{ZR+3}, v{ZR+4}
    v_max3_u32 v{DG}, v{DG}, v{ZR+5}, v{ZR+6}
    v_max_u32 v{DG}, v{DG}, v{ZR+7}
    v_cmp_eq_u32 vcc, -1, v{DG}
    s_cmp_gt_u32 s{s_cnt}, {cfg.spin}
    s_cbranch_scc1 L_zgo
    s_cbranch_vccnz L_zrt
L_zgo:
    """)
    for l in z_reduce()[:-1]: a(l)
    a("s_nop 1")
    a("s_branch L_zok")
```

```python
from g3b import *
import os

O3 = OA + 48
PD = [128, 144, 160, 112]
YB = 32

def chk_ops(qt):
    r = OFR[qt]; t = 222
    L = [f"v_max3_u32 v{t}, v{r}, v{r+1}, v{r+2}", f"v_max3_u32 v{t+1}, v{r+3}, v{r+4}, v{r+5}"]
    for k in range(6, 14, 4):
        L += [f"v_max3_u32 v{t}, v{t}, v{r+k}, v{r+k+1}", f"v_max3_u32 v{t+1}, v{t+1}, v{r+k+2}, v{r+k+3}"]
    L += [f"v_max3_u32 v{t}, v{t}, v{r+14}, v{r+15}", f"v_max_u32 v{t}, v{t}, v{t+1}", f"v_cmp_eq_u32 vcc, -1, v{t}"]
    return L

def o_retry(a, cfg, qt):
    a.label(f"L_ort{qt}")
    a(f"""
    s_add_u32 s{s_cnt}, s{s_cnt}, 1
    s_cmp_gt_u32 s{s_cnt}, {cfg.spin}
    s_cbranch_scc1 L_ook{qt}
    """)
    run_all(a, o_load(qt, None))
    a("s_waitcnt vmcnt(0)")
    for l in chk_ops(qt): a(l)
    a(f"s_cbranch_vccnz L_ort{qt}")
    a(f"s_branch L_ook{qt}")

def publish_last(a, cfg):
    stamp(a, cfg, 8); stamp(a, cfg, 2, 5)
    a.label("L_pub")
    a(f"""
    s_lshl_b32 s{s_t1}, s{s_qt}, 15
    s_add_u32 s{s_t1}, s{s_t1}, s{s_ob}
    """)
    ol = (o_load(0, "ol0") + o_load(1, "ol1") + o_load(2, "ol2"))[cfg.ol_in:]
    assert cfg.ol_in % 5 == 0
    run_all(a, ol[:cfg.ol_pre]); ol = ol[cfg.ol_pre:]
    for it in o_write(O3, L_R3, "ow"): it(a)
    run_all(a, ol[:cfg.ol_mid]); ol = ol[cfg.ol_mid:]
    a.wait(lg="ow")
    a("s_barrier")
    stamp(a, cfg, 3, 5)
    for it in o_read(O3, L_R3, "or3"): it(a)
    run_all(a, ol[:cfg.ol_mid2]); ol = ol[cfg.ol_mid2:]
    a.wait(lg="or3")
    for l in o_norm(O3, 244): a(l)
    if cfg.force_slow_sm & 8: a("s_mov_b64 vcc, -1")
    a(f"""
    s_cmp_lg_u32 vcc_hi, 0
    s_cselect_b32 s{s_t0}, s{s_chk}, 0
    v_permlane32_swap_b32 v244, v246
    v_permlane32_swap_b32 v245, v247
    s_cmp_lg_u32 s{s_t0}, 0
    s_cselect_b32 s{s_t1}, {OOB}, s{s_t1}
    """)
    a(f"buffer_store_dwordx4 v[244:247], v{vO1}, s[{SWS}:{SWS+3}], s{s_t1} offen sc1", "ost3")
    a(f"s_or_b32 s{s_fail}, s{s_fail}, s{s_t0}")
    a("s_cbranch_scc1 L_slow")
    a(f"s_cmp_ge_u32 s{s_j}, 28")
    a("s_cbranch_scc1 L_fin")
    stamp(a, cfg, 9); stamp(a, cfg, 4, 5)
    run_all(a, ol)

def slow_softmax(a, cfg):
    S = S_[0]; P = P_[0]; K = S_[1]; Q = 56
    a(f"""
L_slow:
    s_ff1_i32_b32 s{s_qt}, s{s_fail}
    s_bitset0_b32 s{s_fail}, s{s_qt}
    s_mov_b32 s{s_chk}, 0
    s_mul_i32 s{s_t0}, s{s_qt}, {WVSZ}
    s_add_u32 s{s_t0}, s{s_t0}, {L_WV + L_QX}
    v_add_u32 v240, s{s_t0}, v{v_l16}
    ds_read_b128 v[{Q}:{Q+3}], v240
    ds_read_b128 v[{Q+4}:{Q+7}], v240 offset:1024
    s_sub_u32 s{s_t0}, s{s_kvc}, 65536
    v_mov_b32 v241, 0xff800000
    s_waitcnt vmcnt(0) lgkmcnt(0)
L_slow1:
    buffer_load_dwordx4 v[{K}:{K+3}], v{v_l16}, s[{SWS}:{SWS+3}], s{s_t0} offen sc1
    buffer_load_dwordx4 v[{K+4}:{K+7}], v{v_l16}, s[{SWS}:{SWS+3}], s{s_t0} offen offset:1024 sc1
    s_waitcnt vmcnt(0)
    v_mfma_f32_32x32x16_bf16 v[{S}:{S+15}], v[{K}:{K+3}], v[{Q}:{Q+3}], 0
    v_mfma_f32_32x32x16_bf16 v[{S}:{S+15}], v[{K+4}:{K+7}], v[{Q+4}:{Q+7}], v[{S}:{S+15}]
    """)
    for k in range(8): a(f"v_max3_f32 v241, v241, v{S+2*k}, v{S+2*k+1}")
    a(f"""
    s_add_u32 s{s_t0}, s{s_t0}, 4096
    s_cmp_lt_u32 s{s_t0}, s{s_kvc}
    s_cbranch_scc1 L_slow1
    v_mov_b32 v242, v241
    v_lshl_add_u32 v243, s{s_w}, 2, v{vLr}
    s_nop 1
    v_permlane32_swap_b32 v241, v242
    v_max_f32 v241, v241, v242
    ds_write_b32 v243, v241 offset:{L_MX - L_L}
    s_waitcnt lgkmcnt(0)
    s_barrier
    ds_read_b128 v[244:247], v{vLr} offset:{L_MX - L_L}
    s_sub_u32 s{s_t0}, s{s_kvc}, 65536
    """)
    for k in range(16): a(f"v_mov_b32 v{O3+k}, 0")
    a(f"""
    s_waitcnt lgkmcnt(0)
    v_max3_f32 v241, v244, v245, v246
    v_max_f32 v241, v241, v247
L_slow2:
    buffer_load_dwordx4 v[{K}:{K+3}], v{v_l16}, s[{SWS}:{SWS+3}], s{s_t0} offen sc1
    buffer_load_dwordx4 v[{K+4}:{K+7}], v{v_l16}, s[{SWS}:{SWS+3}], s{s_t0} offen offset:1024 sc1
    buffer_load_dwordx4 v[{K+8}:{K+11}], v{vVL}, s[{SWS}:{SWS+3}], s{s_t0} offen offset:2048 sc1
    buffer_load_dwordx4 v[{K+12}:{K+15}], v{vVL}, s[{SWS}:{SWS+3}], s{s_t0} offen offset:3072 sc1
    s_waitcnt vmcnt(0)
    v_mfma_f32_32x32x16_bf16 v[{S}:{S+15}], v[{K}:{K+3}], v[{Q}:{Q+3}], 0
    v_mfma_f32_32x32x16_bf16 v[{S}:{S+15}], v[{K+4}:{K+7}], v[{Q+4}:{Q+7}], v[{S}:{S+15}]
    """)
    for k in range(16): a(f"v_sub_f32 v{S+k}, v{S+k}, v241")
    for k in range(16): a(f"v_exp_f32 v{S+k}, v{S+k}")
    for k in range(8): a(f"v_cvt_pk_bf16_f32 v{P+k}, v{S+2*k}, v{S+2*k+1}")
    a(f"""
    v_mfma_f32_32x32x16_bf16 v[{O3}:{O3+15}], v[{K+8}:{K+11}], v[{P}:{P+3}], v[{O3}:{O3+15}]
    v_mfma_f32_32x32x16_bf16 v[{O3}:{O3+15}], v[{K+12}:{K+15}], v[{P+4}:{P+7}], v[{O3}:{O3+15}]
    s_add_u32 s{s_t0}, s{s_t0}, 4096
    s_cmp_lt_u32 s{s_t0}, s{s_kvc}
    s_nop 15
    s_cbranch_scc1 L_slow2
    s_branch L_pub
    """)

def p3_mm(a, qt, shadow, fill, frm=0):
    D = PD[qt]; n = 0
    for k in (1, 2, 3, 0):
        for hh in range(4):
            c = "0" if hh == 0 else f"v[{D+4*k}:{D+4*k+3}]"
            a(f"v_mfma_f32_16x16x32_bf16 v[{D+4*k}:{D+4*k+3}], a[{16*hh+4*k}:{16*hh+4*k+3}], v[{OFR[qt]+4*hh}:{OFR[qt]+4*hh+3}], {c}")
            if n in shadow: run_all(a, shadow[n])
            elif n >= frm:
                for _ in range(2):
                    if fill: a(fill.pop(0))
            n += 1
def p3_off(qt): return L_R + 4096*qt if qt < 3 else L_R3
def p3_fin(a, qt):
    D = PD[qt]; G = G32 + 4*qt; X = X32 + 4*qt
    a(f"s_add_u32 s{s_t0}, s{s_outb}, {32*896*qt}")
    a.wait(lg=f"pr{qt}")
    for l in sum4(D): a(l)
    a(f"""
    v_pk_fma_f32 v[{D+2}:{D+3}], v[{D+2}:{D+3}], v[{G+2}:{G+3}], v[{X+2}:{X+3}]
    v_pk_fma_f32 v[{D}:{D+1}], v[{D}:{D+1}], v[{G}:{G+1}], v[{X}:{X+1}]
    v_cvt_pk_bf16_f32 v{D+5}, v{D+2}, v{D+3}
    v_cvt_pk_bf16_f32 v{D+4}, v{D}, v{D+1}
    """)
    a(f"buffer_store_dwordx2 v[{D+4}:{D+5}], v{v_out}, s[{SOUT}:{SOUT+3}], s{s_t0} offen{cfg_out}", "out")

def p3(a, cfg):
    global cfg_out
    cfg_out = {0: "", 1: " sc1", 2: " nt", 3: " sc0 sc1"}[cfg.outf]
    a.c("output projection")
    run_all(a, a.tr_rest)
    a(f"""
    s_cmp_lg_u32 s{s_sp}, 0
    s_cbranch_scc1 L_y1
L_y1_ret:
    """)
    a.wait(vm="xv")
    a(f"v_mov_b32 v{STA}, {hex(f2u(-LOG2E))}")
    gq = [g_code(qt) for qt in range(4)]
    for _ in range(cfg.g_pre):
        for l in gq.pop(0): a(l)
    stamp(a, cfg, 10); stamp(a, cfg, 5, 5)
    a.wait(vm="ol0")
    for l in chk_ops(0): a(l)
    a.wait(lg="wt")
    for qt in range(3):
        a(f"s_cbranch_vccnz L_ort{qt}")
        a.label(f"L_ook{qt}")
        stamp(a, cfg, 6 + qt, 5)
        wr = o_write(PD[qt], p3_off(qt), "pw")
        shadow = {9: [wr[0]], 13: [wr[1]]}
        if qt > 0: shadow[0] = [o_write(PD[qt-1], p3_off(qt-1), "pw")[2]]
        fill = []
        if qt < 2:
            shadow[5] = [W(vm=f"ol{qt+1}")]; fill = chk_ops(qt + 1)
        if qt == cfg.o3_at:
            ld = o_load(3, "ol3")
            shadow[1] = ld[:2]; shadow[2] = ld[2:3]; shadow[3] = ld[3:4]; shadow[4] = ld[4:]
        p3_mm(a, qt, shadow, fill, 6)
        assert not fill
    if cfg.o3_at == 3: run_all(a, o_load(3, "ol3"))
    wr[2](a)
    for g in gq:
        for l in g: a(l)
    a(f"""
    s_cmp_lg_u32 s{s_sp}, 0
    s_cbranch_scc1 L_y2
L_y2_ret:
    """)
    a.wait(lg="pw")
    a("s_barrier")
    stamp(a, cfg, 9, 5)
    for qt in range(3): run_all(a, o_read(PD[qt], p3_off(qt), f"pr{qt}"))
    for qt in range(3): p3_fin(a, qt)
    stamp(a, cfg, 11); stamp(a, cfg, 10, 5)
    a.wait(vm="ol3")
    for l in chk_ops(3): a(l)
    a(f"s_cbranch_vccnz L_ort3")
    a.label(f"L_ook3")
    stamp(a, cfg, 12); stamp(a, cfg, 11, 5)
    wr = o_write(PD[3], p3_off(3), "pw")
    p3_mm(a, 3, {11: [wr[0]], 14: [wr[1]]}, [])
    wr[2](a)
    a.wait(lg="pw")
    a("s_barrier")
    stamp(a, cfg, 12, 5)
    run_all(a, o_read(PD[3], p3_off(3), "pr3"))
    p3_fin(a, 3)

def special(a, cfg):
    Y = YB; A0, A1, XS, C = Y + 8, Y + 9, Y + 10, Y + 12
    a(f"""
L_y1:
    s_mov_b32 s{s_md}, 0
L_y1a:
    s_bitcmp1_b32 s{s_sp}, 0
    s_cselect_b32 s{s_t0}, 0, 7
    s_cselect_b32 s{s_ia}, s{s_ia}, s{s_ib}
    s_cselect_b32 s{s_k1}, s{s_k1}, s{s_k2}
    s_cselect_b32 s{s_sa}, s{s_sa}, s{s_sb}
    s_add_u32 s{s_t0}, s{s_t0}, s{s_cg}
    s_mul_i32 s{s_t0}, s{s_t0}, {28*256}
    s_add_u32 s{s_zin}, s{s_t0}, {WS_Y}
    v_and_b32 v{C}, 15, v{v_lane}
    v_and_b32 v{XS}, 127, v{v_out}
    v_cmp_gt_u32 vcc, 12, v{C}
    v_lshlrev_b32 v{A0}, 1, v{XS}
    v_lshl_add_u32 v{A0}, v{C}, 8, v{A0}
    v_mov_b32 v{Y}, {OOB}
    v_add_u32 v{A1}, 4096, v{A0}
    s_mul_i32 s{s_t0}, s{s_ia}, 896
    s_lshl_b32 s{s_t3}, s{s_cg}, 7
    s_add_u32 s{s_t0}, s{s_t0}, s{s_t3}
    v_cndmask_b32 v{A1}, v{Y}, v{A1}, vcc
    s_and_b32 s{s_t3}, s{s_ia}, 15
    buffer_load_dwordx2 v[{XS}:{XS+1}], v{XS}, s[{SX}:{SX+3}], s{s_t0} offen
    v_cmp_eq_u32 s[{s_sv}:{s_sv+1}], s{s_t3}, v{C}
L_y1b:
    buffer_load_dwordx4 v[{Y}:{Y+3}], v{A0}, s[{SWS}:{SWS+3}], s{s_zin} offen sc1
    buffer_load_dwordx4 v[{Y+4}:{Y+7}], v{A1}, s[{SWS}:{SWS+3}], s{s_zin} offen sc1
    s_cmp_eq_u32 s{s_md}, 0
    s_cbranch_scc1 L_y1_ret
    s_waitcnt vmcnt(0)
L_y2:
    s_and_b32 s{s_t0}, s{s_k1}, 0xfffff800
    s_cmp_lt_i32 s{s_t0}, 0
    s_cselect_b32 s{s_t3}, 0x80000000, -1
    s_xor_b32 s{s_t0}, s{s_t0}, s{s_t3}
    v_mov_b32 v{C+2}, s{s_t0}
    s_mov_b32 s{s_md}, 1
    s_add_u32 s{s_cnt}, s{s_cnt}, 1
    v_cvt_pk_bf16_f32 v{C+2}, v{C+2}, v{C+2}
    s_waitcnt vmcnt(4)
    v_max3_u32 v{C}, v{Y}, v{Y+1}, v{Y+2}
    v_max3_u32 v{C+1}, v{Y+3}, v{Y+4}, v{Y+5}
    v_max3_u32 v{C}, v{C}, v{Y+6}, v{Y+7}
    v_max_u32 v{C}, v{C}, v{C+1}
    v_cmp_eq_u32 vcc, -1, v{C}
    s_cmp_gt_u32 s{s_cnt}, {cfg.spin}
    s_cbranch_scc1 L_y2a
    s_cbranch_vccnz L_y1b
L_y2a:
    v_pk_add_f32 v[{Y}:{Y+1}], v[{Y}:{Y+1}], v[{Y+4}:{Y+5}]
    v_pk_add_f32 v[{Y+2}:{Y+3}], v[{Y+2}:{Y+3}], v[{Y+6}:{Y+7}]
    v_and_b32 v{C+2}, s{s_hi16}, v{C+2}
    s_and_b32 s{s_t0}, s{s_sa}, s{s_hi16}
    s_lshl_b32 s{s_t3}, s{s_sa}, 16
    """)
    for ctl in ("quad_perm:[1,0,3,2]", "quad_perm:[2,3,0,1]", "row_half_mirror", "row_mirror"):
        for i in range(4): a(f"v_add_f32_dpp v{Y+i}, v{Y+i}, v{Y+i} {ctl} row_mask:0xf bank_mask:0xf")
    a(f"""
    v_mul_f32 v{C+2}, {hex(f2u(-LOG2E))}, v{C+2}
    v_rcp_f32 v{C}, s{s_t0}
    v_exp_f32 v{C+2}, v{C+2}
    v_lshlrev_b32 v{Y+4}, 16, v{XS}
    v_and_b32 v{Y+5}, s{s_hi16}, v{XS}
    v_add_f32 v{C+2}, 1.0, v{C+2}
    v_lshlrev_b32 v{Y+6}, 16, v{XS+1}
    v_rcp_f32 v{C+2}, v{C+2}
    v_and_b32 v{Y+7}, s{s_hi16}, v{XS+1}
    v_mul_f32 v{C+4}, s{s_t3}, v{C}
    v_mov_b32 v{XS}, {hex(f2u(-LOG2E))}
    v_pk_fma_f32 v[{Y+4}:{Y+5}], v[{Y+4}:{Y+5}], v[{C}:{C+1}], v[{C+4}:{C+5}] op_sel_hi:[1,0,0] neg_lo:[0,0,1] neg_hi:[0,0,1]
    v_pk_fma_f32 v[{Y+6}:{Y+7}], v[{Y+6}:{Y+7}], v[{C}:{C+1}], v[{C+4}:{C+5}] op_sel_hi:[1,0,0] neg_lo:[0,0,1] neg_hi:[0,0,1]
    s_bfe_u32 s{s_t0}, s{s_ia}, 0x20005
    v_pk_fma_f32 v[{Y}:{Y+1}], v[{Y}:{Y+1}], v[{C+2}:{C+3}], v[{Y+4}:{Y+5}] op_sel_hi:[1,0,1]
    v_pk_fma_f32 v[{Y+2}:{Y+3}], v[{Y+2}:{Y+3}], v[{C+2}:{C+3}], v[{Y+6}:{Y+7}] op_sel_hi:[1,0,1]
    """)
    for l in silu4(Y, Y + 4, XS): a(l)
    for qt in range(4):
        n = G32 + 4*qt
        a(f"""
        s_cmp_eq_u32 s{s_t0}, {qt}
        s_cselect_b64 exec, s[{s_sv}:{s_sv+1}], 0
        v_mov_b64 v[{n}:{n+1}], v[{Y}:{Y+1}]
        v_mov_b64 v[{n+2}:{n+3}], v[{Y+2}:{Y+3}]
        """)
    a(f"""
    s_mov_b64 exec, -1
    s_cmp_eq_u32 s{s_sp}, 3
    s_cbranch_scc0 L_y2_ret
    s_mov_b32 s{s_sp}, 2
    s_branch L_y1a
    """)

def prof_out(a, cfg):
    a("s_waitcnt vmcnt(0)")
    stamp(a, cfg, 13)
    if cfg.probe >= 0:
        a(f"""
        v_readlane_b32 s{s_t2}, v0, 0
        v_readlane_b32 s{s_t0}, v0, {cfg.probe}
        s_sub_u32 s{s_t0}, s{s_t0}, s{s_t2}
        s_and_b32 s{s_t0}, s{s_t0}, 0xfff
        s_lshl_b32 s{s_t0}, s{s_t0}, 2
        s_add_u32 s{s_t0}, s{s_t0}, 5000
L_probe:
        s_memrealtime s[{s_sv}:{s_sv+1}]
        s_waitcnt lgkmcnt(0)
        s_sub_u32 s{s_t1}, s{s_sv}, s{s_t2}
        s_cmp_lt_u32 s{s_t1}, s{s_t0}
        s_cbranch_scc1 L_probe
        """)
        return
    a(f"""
    s_lshl2_add_u32 s{s_t0}, s2, s{s_w}
    s_lshl_b32 s{s_t0}, s{s_t0}, 6
    s_add_u32 s{s_t0}, s{s_t0}, {WS_PROF}
    v_writelane_b32 v0, s{s_cnt}, 14
    v_writelane_b32 v0, s{s_sp}, 15
    s_mov_b64 exec, 0xffff
    buffer_store_dword v0, v{v_l4}, s[{SWS}:{SWS+3}], s{s_t0} offen
    """)

HERE = os.path.dirname(os.path.abspath(__file__))
HEADER = open(HERE + "/../cdna_kernels/recurrent_scan__mha_block__moe_arch_mod__prompt.s.ref").read().split("; Override launch")[0]

def build(cfg):
    a = Asm(); a.prev_stamp = None; a.verbose = cfg.verbose
    prologue(a, cfg)
    a(f"""
    s_cmp_eq_u32 s{s_p}, 0
    s_cbranch_scc0 L_typeV
    """)
    snap = (list(a.vm), list(a.lg)); ps = a.prev_stamp
    p1_main(a, cfg, 0)
    a("s_branch L_join")
    end0 = (list(a.vm), list(a.lg))
    a.vm, a.lg = snap; a.prev_stamp = ps
    a.label("L_typeV")
    p1_main(a, cfg, 1)
    assert end0 == (a.vm, a.lg)
    a.label("L_join")
    stamp(a, cfg, 2); stamp(a, cfg, 11, 2); stamp(a, cfg, 3, 3)
    q_phase(a, cfg)
    attention(a, cfg)
    publish_last(a, cfg)
    p3(a, cfg)
    a.label("L_fin")
    if cfg.prof: prof_out(a, cfg)
    a("s_endpgm")
    leader_code(a)
    handoff_slow(a, cfg)
    attention_slow(a, cfg)
    for qt in range(4): o_retry(a, cfg, qt)
    special(a, cfg)
    slow_softmax(a, cfg)
    a.label("L_end")
    a("s_endpgm")
    print("auto nops:", a.nops, file=sys.stderr)
    return HEADER + f"""; Generated by my own generator script (gen/gen3.py). One persistent workgroup per CU. {" ".join(sys.argv[2:])}
; @launch grid=(256,1,1) block=(256,1,1) lds={LDS_SIZE}
.amdgcn_target "amdgcn-amd-amdhsa--gfx950"
.text
.globl {NAME}
.p2align 8
.type {NAME},@function
{NAME}:
""" + a.text() + f""".section .rodata,"a"
.p2align 6
.amdhsa_kernel {NAME}
  .amdhsa_next_free_vgpr 512
  .amdhsa_next_free_sgpr 102
  .amdhsa_accum_offset 256
  .amdhsa_group_segment_fixed_size 0
  .amdhsa_kernarg_size 88
  .amdhsa_user_sgpr_count 2
  .amdhsa_user_sgpr_kernarg_segment_ptr 1
  .amdhsa_system_sgpr_workgroup_id_x 1
.end_amdhsa_kernel
"""

if __name__ == "__main__":
    cfg = Cfg()
    for kv in sys.argv[2:]:
        k, val = kv.split("=")
        assert hasattr(cfg, k), k
        setattr(cfg, k, int(val))
    open(sys.argv[1], "w").write(build(cfg))
```
